```python
import torch

def _softmax(x, axis=-1):
    return torch.softmax(x, dim=axis)
def _gelu(x):
    return torch.nn.functional.gelu(x, approximate="tanh")
def _silu(x):
    return torch.nn.functional.silu(x)
def _sigmoid(x):
    return torch.sigmoid(x)
def _layernorm(x, axis=-1, eps=1e-5):
    m = x.mean(dim=axis, keepdim=True)
    v = x.var(dim=axis, keepdim=True, unbiased=False)
    return (x - m) / torch.sqrt(v + eps)
def _scatter_add(tgt, idx, src, axis=0):
    return tgt.clone().index_add_(axis, idx, src)
def _segment_sum(src, seg, n):
    out = torch.zeros((n,) + src.shape[1:], dtype=src.dtype)
    return out.index_add_(0, seg, src)
def _pad(x, pw):
    flat = tuple(v for pair in reversed(pw) for v in pair)
    return torch.nn.functional.pad(x, flat)

kernel_name = 'recurrent_scan__ssm_conv_h3__dense_activation_mish__prompt'

def setup_inputs():

    _w = (lambda a: (lambda t: t.to(torch.bfloat16) if t.is_floating_point() else t)(torch.as_tensor(a)))
    def _A_setup():
        B, S, D = 1, 2048, 512
        ks = 4
        return {
            "q": _w((lambda *s: torch.randn(*s, dtype=torch.bfloat16) * 0.05)(B, S, D)),
            "k": _w((lambda *s: torch.randn(*s, dtype=torch.bfloat16) * 0.8)(B, S, D)),
            "v": _w((lambda *s: torch.randn(*s, dtype=torch.bfloat16) * 0.8)(B, S, D)),
            "shift_k": _w((lambda *s: torch.randn(*s, dtype=torch.bfloat16) * 0.8)(D, ks) * 0.5),
            "ssm_k": _w((lambda *s: torch.randn(*s, dtype=torch.bfloat16) * 0.8)(D, S) * (1.0 / S ** 0.5)),
            "ssm_D": _w((lambda *s: torch.randn(*s, dtype=torch.bfloat16) * 0.8)(D)),
        }
    _A_in = _A_setup()

    def _B_setup():
        B, S, D, F = 1, 2048, 512, 1792
        return {
            "x": _w((lambda *s: torch.randn(*s, dtype=torch.bfloat16) * 0.05)(B, S, D)),
            "w1": _w((lambda *s: torch.randn(*s, dtype=torch.bfloat16) * 0.8)(D, F) * (D ** -0.5)),
            "b1": _w((lambda *s: torch.randn(*s, dtype=torch.bfloat16) * 0.2)(F)),
            "w2": _w((lambda *s: torch.randn(*s, dtype=torch.bfloat16) * 0.2)(F, D) * (F ** -0.5)),
        }
    _B_in = _B_setup()

    return {
        "A_q": _A_in["q"],
        "A_k": _A_in["k"],
        "A_v": _A_in["v"],
        "A_shift_k": _A_in["shift_k"],
        "A_ssm_k": _A_in["ssm_k"],
        "A_ssm_D": _A_in["ssm_D"],
        "B_x": _B_in["x"],
        "B_w1": _B_in["w1"],
        "B_b1": _B_in["b1"],
        "B_w2": _B_in["w2"],
    }

def reference(A_q, A_k, A_v, A_shift_k, A_ssm_k, A_ssm_D, B_x, B_w1, B_b1, B_w2):
    def _A_ref(q, k, v, shift_k, ssm_k, ssm_D):
        B, S, D = q.shape
        ks = shift_k.shape[-1]
        k_pad = _pad(k, ((0, 0), (ks - 1, 0), (0, 0)))
        k_shift = torch.zeros_like(k)
        for t in range(ks):
            k_shift = k_shift + k_pad[:, t:t + S, :] * shift_k[:, ks - 1 - t][None, None, :]
        kv = k_shift * v
        L = 2 * S
        kv_pad = _pad(kv, ((0, 0), (0, S), (0, 0)))
        kf_pad = _pad(ssm_k, ((0, 0), (0, S)))
        kv_f = (lambda x, axes=(-2,-1): torch.fft.rfft2(x.float(), dim=axes))(kv_pad[:, None, :, :], axes=(1, 2))
        kf_f = (lambda x, axes=(-2,-1): torch.fft.rfft2(x.float(), dim=axes))(kf_pad[:, None, :], axes=(1, 2))
        kf_f = (lambda x, *d: x.permute(*d))(kf_f, 1, 2, 0)
        y_f = kv_f * kf_f[None, :, :, :]
        y = (lambda x, s, axes=(-2,-1): torch.fft.irfft2(x, s=s, dim=axes).to(torch.bfloat16))(y_f, (1, L), axes=(1, 2))[:, 0, :S, :]
        y = y + kv * ssm_D[None, None, :]
        return q * y

    def _B_ref(x, w1, b1, w2):
        h = torch.einsum("bsd,df->bsf", x, w1) + b1
        sp = torch.log1p(torch.exp(-torch.abs(h))) + torch.where(h > 0, h, torch.zeros_like(h))
        act = h * torch.tanh(sp)
        return torch.einsum("bsf,fd->bsd", act, w2)

    x = A_q
    xn = _layernorm(x, axis=-1)
    s = _A_ref(xn, A_k, A_v, A_shift_k, A_ssm_k, A_ssm_D)
    g = _silu(_B_ref(xn, B_w1, B_b1, B_w2))
    return x + s * g
```

```python
import re


def v(a, n=1):
    return f"v{a}" if n == 1 else f"v[{a}:{a+n-1}]"


def a(a_, n=1):
    return f"a{a_}" if n == 1 else f"a[{a_}:{a_+n-1}]"


def s(a_, n=1):
    return f"s{a_}" if n == 1 else f"s[{a_}:{a_+n-1}]"


class Counter:
    def __init__(self, name, maxn):
        self.name = name
        self.maxn = maxn
        self.ops = []

    def issue(self, tag, opt=False):
        self.ops.append((tag, opt))

    def need(self, tag):
        last = -1
        for i, (t, _) in enumerate(self.ops):
            if t == tag:
                last = i
        if last < 0:
            return None
        n = sum(1 for (t, o) in self.ops[last + 1:] if not o)
        n = min(n, self.maxn)
        return n, last

    def retire_upto(self, last):
        self.ops = self.ops[last + 1:]

    def snapshot(self):
        return list(self.ops)

    def restore(self, snap):
        self.ops = list(snap)


class Emit:
    def __init__(self):
        self.lines = []
        self.vm = Counter("vmcnt", 63)
        self.lg = Counter("lgkmcnt", 15)
        self.uid = 0

    def I(self, text):
        self.lines.append("    " + text)

    def label(self, name):
        self.lines.append(name + ":")

    def comment(self, text):
        self.lines.append("    ; " + text)

    def newlabel(self, base):
        self.uid += 1
        return f"L_{base}_{self.uid}"

    def vmem(self, text, tag, opt=False):
        self.I(text)
        self.vm.issue(tag, opt)

    def lds(self, text, tag):
        self.I(text)
        self.lg.issue(tag)

    def wait_vm(self, *tags):
        best = None
        for t in tags:
            r = self.vm.need(t)
            if r is not None and (best is None or r[1] > best[1]):
                best = r
        if best is None:
            return
        n, last = best
        self.I(f"s_waitcnt vmcnt({n})")
        self.vm.retire_upto(last)

    def wait_lg(self, *tags):
        best = None
        for t in tags:
            r = self.lg.need(t)
            if r is not None and (best is None or r[1] > best[1]):
                best = r
        if best is None:
            return
        n, last = best
        self.I(f"s_waitcnt lgkmcnt({n})")
        self.lg.retire_upto(last)

    def wait_vm_all(self):
        self.I("s_waitcnt vmcnt(0)")
        self.vm.ops = []

    def wait_lg_all(self):
        self.I("s_waitcnt lgkmcnt(0)")
        self.lg.ops = []

    def wait_all(self):
        self.I("s_waitcnt vmcnt(0) lgkmcnt(0)")
        self.vm.ops = []
        self.lg.ops = []

    def snapshot(self):
        return (self.vm.snapshot(), self.lg.snapshot())

    def restore(self, snap):
        self.vm.restore(snap[0])
        self.lg.restore(snap[1])

    def text(self):
        return "\n".join(fix_hazards(self.lines)) + "\n"


_REG = re.compile(r"^(-|abs\(|\|)?([vas])(\d+)\)?\|?$|^(-|abs\(|\|)?([vas])\[(\d+):(\d+)\]\)?\|?$")


def regs_of(op):
    op = op.strip()
    if op == "vcc":
        return {("s", "vcc")}
    if op == "exec":
        return {("s", "exec")}
    if op == "m0":
        return {("s", "m0")}
    m = _REG.match(op)
    if not m:
        return set()
    if m.group(2):
        return {(m.group(2), int(m.group(3)))}
    return {(m.group(5), i) for i in range(int(m.group(6)), int(m.group(7)) + 1)}


TRANS = ("v_exp_f32", "v_log_f32", "v_rcp_f32", "v_rsq_f32", "v_sqrt_f32", "v_sin_f32", "v_cos_f32")
RMW = ("v_fmac_f32", "v_dot2c_f32_bf16", "v_writelane_b32")


class Ins:
    def __init__(self, text):
        self.text = text
        t = text.split(";")[0].strip()
        self.empty = (t == "" or t.endswith(":") or t.startswith("."))
        self.is_label = t.endswith(":")
        self.mn = ""
        self.dst = set()
        self.src = set()
        self.srcC = set()
        self.srcAB = set()
        self.kind = "other"
        self.states = 1
        self.passes = 0
        self.dpp = False
        self.store_wide = False
        self.ldsdma = False
        if self.empty:
            self.states = 0
            return
        parts = t.split(None, 1)
        self.mn = mn = parts[0]
        rest = parts[1] if len(parts) > 1 else ""
        ops = [o.strip() for o in rest.split(",")]
        if ops:
            lastp = ops[-1].split()
            if lastp:
                ops[-1] = lastp[0]
                mods = " ".join(lastp[1:])
            else:
                mods = ""
        else:
            mods = ""
        self.mods = mods
        R = [regs_of(o) for o in ops]
        if mn == "s_nop":
            self.kind = "nop"
            self.states = int(ops[0], 0) + 1
        elif mn.startswith("v_mfma"):
            self.kind = "mfma"
            self.passes = 8 if "32x32x16" in mn else 4
            self.dst = R[0]
            self.srcAB = R[1] | R[2]
            self.srcC = R[3]
            self.src = self.srcAB | self.srcC
        elif mn.startswith("ds_read"):
            self.kind = "ds"
            self.dst = R[0]
            self.src = R[1]
        elif mn.startswith("ds_write"):
            self.kind = "ds"
            for r in R:
                self.src |= r
        elif mn.startswith("buffer_load") or mn.startswith("global_load"):
            self.kind = "vmem"
            if " lds" in (" " + rest) or "_lds_" in mn:
                self.ldsdma = True
                for r in R:
                    self.src |= r
                self.src |= {("s", "m0")}
            else:
                self.dst = R[0]
                for r in R[1:]:
                    self.src |= r
        elif mn.startswith("buffer_store") or mn.startswith("global_store") or mn.startswith("buffer_atomic"):
            self.kind = "vmem"
            for r in R:
                self.src |= r
            if "x4" in mn or "x3" in mn:
                self.store_wide = True
                self.store_data = R[0] if mn.startswith("buffer") else R[1]
        elif mn.startswith("v_"):
            self.kind = "valu"
            self.dpp = ("_dpp" in mn) or ("quad_perm" in mods) or ("row_" in mods)
            if mn.startswith("v_cmp"):
                self.dst = R[0]
                for r in R[1:]:
                    self.src |= r
            elif mn.startswith("v_permlane"):
                self.dst = R[0] | R[1]
                self.src = R[0] | R[1]
            elif mn.startswith("v_add_co") or mn.startswith("v_sub_co"):
                self.dst = R[0] | R[1]
                for r in R[2:]:
                    self.src |= r
            elif mn.startswith("v_addc_co") or mn.startswith("v_subb_co"):
                self.dst = R[0] | R[1]
                for r in R[2:]:
                    self.src |= r
            else:
                self.dst = R[0]
                for r in R[1:]:
                    self.src |= r
                base = mn.replace("_e32", "").replace("_e64", "").replace("_dpp", "")
                if base in RMW:
                    self.src |= R[0]
                if base.startswith("v_cndmask") and len(ops) == 3:
                    self.src |= {("s", "vcc")}
            base = mn.replace("_e32", "").replace("_e64", "")
            self.trans = base in TRANS
            self.dot = base.startswith("v_dot2")
            self.readlane = base.startswith("v_readlane") or base.startswith("v_readfirstlane")
            self.permlane = base.startswith("v_permlane")
        elif mn.startswith("s_"):
            self.kind = "salu"
            if mn.startswith("s_cmp") or mn.startswith("s_cbranch") or mn.startswith("s_branch") or \
                    mn in ("s_waitcnt", "s_barrier", "s_endpgm", "s_sleep", "s_setprio", "s_bitcmp1_b32", "s_bitcmp0_b32"):
                for r in R:
                    self.src |= r
            else:
                if R:
                    self.dst = R[0]
                for r in R[1:]:
                    self.src |= r


def _vec(x):
    return {r for r in x if r[0] in ("v", "a")}


def _sg(x):
    return {r for r in x if r[0] == "s"}


def required(p, c):
    need = 0
    if p.kind == "valu":
        pw = _vec(p.dst)
        pws = _sg(p.dst)
        if pw:
            if c.kind == "mfma" and pw & c.src:
                need = max(need, 2)
            if c.kind == "valu":
                if c.readlane and pw & c.src:
                    need = max(need, 1)
                if (c.dpp or c.permlane) and pw & c.src:
                    need = max(need, 2)
                if p.trans and not c.trans and pw & c.src:
                    need = max(need, 1)
                if p.trans and c.trans and pw & c.src:
                    need = max(need, 1)
                if p.dot and (pw & (c.src | c.dst)):
                    if not (c.mn == p.mn and pw == (c.dst & pw) and not (pw & (c.src - c.dst))):
                        need = max(need, 3)
            elif p.dot and c.kind in ("vmem", "ds") and pw & c.src:
                need = max(need, 3)
            if p.trans and c.kind in ("vmem", "ds", "mfma") and pw & c.src:
                need = max(need, 2)
        if pws:
            if c.kind == "valu" and pws & c.src:
                need = max(need, 4 if c.readlane else 2)
            if c.kind in ("vmem",) and pws & c.src:
                need = max(need, 5)
            if c.kind == "salu" and pws & c.src:
                need = max(need, 2)
    elif p.kind == "mfma":
        big = p.passes == 8
        D = p.dst
        if c.kind == "mfma":
            if D & c.srcAB:
                need = max(need, 12 if big else 8)
            if D & c.srcC and not (c.srcC == D and c.passes == p.passes):
                need = max(need, 10 if big else 6)
            if D & c.dst and not (c.dst == D and c.passes == p.passes):
                need = max(need, 10 if big else 6)
        elif c.kind == "valu":
            if D & (c.src | c.dst):
                need = max(need, 12 if big else 8)
            if p.srcC & c.dst:
                need = max(need, 7 if big else 3)
        elif c.kind in ("vmem", "ds"):
            if D & (c.src | c.dst):
                need = max(need, 12 if big else 8)
    elif p.kind == "salu":
        if ("s", "m0") in p.dst and c.ldsdma:
            need = max(need, 1)
        if ("s", "exec") in p.dst and c.kind == "valu" and (c.dpp or c.permlane):
            need = max(need, 1)
    elif p.kind == "vmem" and p.store_wide:
        if c.kind == "valu" and p.store_data & c.dst:
            need = max(need, 2)
        elif c.kind in ("ds", "vmem", "mfma") and p.store_data & c.dst:
            need = max(need, 1)
    return need


def fix_hazards(lines, window=24):
    out = []
    hist = []
    for ln in lines:
        ins = Ins(ln)
        if ins.empty:
            out.append(ln)
            continue
        if ins.kind != "nop":
            dist = 0
            extra = 0
            for p in reversed(hist[-window:]):
                r = required(p, ins)
                if r > dist:
                    extra = max(extra, r - dist)
                dist += p.states
                if dist >= 13:
                    break
            while extra > 0:
                k = min(extra, 16)
                nop = f"    s_nop {k-1}"
                out.append(nop)
                hist.append(Ins(nop))
                extra -= k
        out.append(ln)
        hist.append(ins)
    return out
```

```python
from asmlib import v, a, s
from gen import *


def conv_h_loads(g):
    e = g.e
    e.I(f"s_lshl_b32 {s(sCH)}, s2, 1")
    e.I(f"s_add_u32 {s(sCH)}, {s(sCH)}, {s(sFH)}")
    e.I(f"s_lshl_b32 {s(sT0)}, {s(sCH)}, 12")
    e.I(f"s_add_u32 {s(rH)}, {s(pH)}, {s(sT0)}")
    e.I(f"s_addc_u32 {s(rH+1)}, {s(pH+1)}, 0")
    e.I(f"s_mov_b32 {s(rH+2)}, 4096")
    e.I(f"s_mov_b32 {s(rH+3)}, 0x00020000")
    e.I(f"s_load_dwordx2 {s(sT2,2)}, {s(rH,2)}, 0")
    e.I(f"s_mul_i32 {s(sT4)}, {s(sFH)}, {HC_CH}")
    e.I(f"s_mul_i32 {s(sT5)}, {s(sSH)}, {HC_RHO}")
    e.I(f"s_add_u32 {s(sT6)}, {s(sT4)}, {s(sT5)}")
    e.I(f"s_lshl_b32 {s(sT4)}, {s(sSH)}, 1")
    e.I(f"s_sub_u32 {s(sT4)}, {s(sT4)}, 250")
    e.I(f"v_lshl_add_u32 v200, v1, 4, {s(sT4)}")
    for n in range(5):
        if n:
            e.I("v_add_u32 v200, 1024, v200")
        if n == 4:
            e.I(f"s_mov_b64 {s(sEX,2)}, exec")
            e.I("s_mov_b64 exec, 0xffff")
        e.I(f"s_add_u32 m0, {s(sT6)}, {HC + 1024*n}")
        e.vmem(f"buffer_load_dwordx4 v200, {s(rH,4)}, 0 offen lds", "hc")
        if n == 4:
            e.I(f"s_mov_b64 exec, {s(sEX,2)}")
    e.I("s_waitcnt lgkmcnt(0)")
    e.I(f"s_lshl_b32 {s(sT4)}, {s(sT2)}, 16")
    e.I(f"s_lshr_b32 {s(sT5)}, {s(sT2)}, 16")
    e.I(f"s_lshl_b32 {s(sT0)}, {s(sT3)}, 16")
    e.I(f"s_or_b32 {s(sT5)}, {s(sT5)}, {s(sT0)}")
    e.I(f"s_cmp_eq_u32 {s(sSH)}, 0")
    e.I(f"s_cselect_b32 {s(sT4)}, {s(sT4)}, {s(sT2)}")
    e.I(f"s_cselect_b32 {s(sT5)}, {s(sT5)}, {s(sT3)}")
    e.I("v_mov_b32 v204, 0")
    e.I("v_mov_b32 v205, 0")
    e.I(f"v_mov_b32 v206, {s(sT4)}")
    e.I(f"v_mov_b32 v207, {s(sT5)}")
    e.I(f"s_add_u32 {s(sT6)}, {s(sT6)}, {HC + 240}")
    e.I(f"v_mov_b32 v203, {s(sT6)}")


def conv_h_patch(g):
    e = g.e
    e.wait_vm("hc")
    e.I(f"s_mov_b64 {s(sEX,2)}, exec")
    e.I("s_mov_b64 exec, 1")
    e.lds("ds_write_b128 v203, v[204:207]", "hpatch")
    e.I(f"s_mov_b64 exec, {s(sEX,2)}")


def conv_u_loads(g):
    e = g.e

    def setup():
        e.I("v_and_b32 v250, 31, v1")
        e.I(f"s_and_b32 {s(sT2)}, s2, 0xe0")
        e.I(f"v_add_u32 v250, {s(sT2)}, v250")
        e.I("v_lshlrev_b32 v250, 7, v250")
    g.poll(setup)
    e.I(f"s_lshl_b32 {s(sT0)}, {s(sCH)}, 12")
    e.I(f"s_add_u32 {s(sT0)}, {s(sT0)}, {UT}")
    e.I(f"s_add_u32 {s(rU)}, {s(pWS)}, {s(sT0)}")
    e.I(f"s_addc_u32 {s(rU+1)}, {s(pWS+1)}, 0")
    e.I(f"s_mov_b32 {s(rU+2)}, 4096")
    e.I(f"s_mov_b32 {s(rU+3)}, 0x00020000")
    e.I(f"s_lshl_b32 {s(sT1)}, {s(sSH)}, 2")
    e.I(f"s_sub_u32 {s(sT1)}, 4, {s(sT1)}")
    e.I(f"v_lshl_add_u32 v208, v1, 4, {s(sT1)}")
    for n in range(4):
        e.vmem(f"buffer_load_dwordx4 {v(212+4*n,4)}, v208, {s(rU,4)}, 0 offen offset:{1024*n} sc1", f"u{n}")
    e.I(f"s_mul_i32 {s(sT0)}, {s(sFH)}, {UR_CH}")
    e.I(f"s_mul_i32 {s(sT1)}, {s(sSH)}, {UR_P}")
    e.I(f"s_add_u32 {s(sT0)}, {s(sT0)}, {s(sT1)}")
    e.I(f"s_add_u32 {s(sT0)}, {s(sT0)}, {UR}")
    e.I("v_lshrrev_b32 v209, 4, v1")
    e.I("v_add_u32 v209, v209, v1")
    e.I(f"v_lshl_add_u32 v209, v209, 4, {s(sT0)}")
    e.I(f"v_lshl_add_u32 v210, v1, 4, {s(sT0)}")
    for k in range(4):
        e.I(f"v_mov_b32 {v(228+k)}, 0")
    e.lds("ds_write_b128 v210, v[228:231] offset:4352", "uz")
    e.lds("ds_write_b128 v210, v[228:231] offset:5376", "uz")
    for n in range(4):
        e.wait_vm(f"u{n}")
        e.lds(f"ds_write_b128 v209, {v(212+4*n,4)} offset:{1088*n}", "uw")


def conv_main(g, hook=None):
    e = g.e
    ACC0, ACC1, BR, WIN = 8, 24, 40, 64
    vA, vB = 200, 201
    e.I("v_and_b32 v202, 1, v1")
    e.I(f"v_mul_u32_u24 v202, {HC_RHO}, v202")
    e.I("v_bfe_u32 v203, v1, 1, 3")
    e.I("v_lshl_add_u32 v202, v203, 5, v202")
    e.I("v_lshrrev_b32 v204, 4, v1")
    e.I("v_lshl_add_u32 v202, v204, 9, v202")
    e.I(f"s_mul_i32 {s(sT0)}, {s(sFH)}, {HC_CH}")
    e.I(f"s_add_u32 {s(sT0)}, {s(sT0)}, {HC}")
    e.I(f"v_add_u32 {v(vA)}, {s(sT0)}, v202")
    e.I("v_and_b32 v202, 1, v1")
    e.I(f"v_mul_u32_u24 v202, {UR_P}, v202")
    e.I("v_lshlrev_b32 v204, 1, v204")
    e.I("v_sub_u32 v204, v204, v203")
    e.I("v_add_u32 v204, 7, v204")
    e.I("v_mul_u32_u24 v204, 272, v204")
    e.I("v_add_u32 v202, v202, v204")
    e.I(f"s_mul_i32 {s(sT0)}, {s(sFH)}, {UR_CH}")
    e.I(f"s_add_u32 {s(sT0)}, {s(sT0)}, {UR}")
    e.I(f"v_add_u32 {v(vB)}, {s(sT0)}, v202")
    e.wait_lg_all()
    e.I("s_barrier")

    def run(steps, name):
        wins_issued = set()
        nb = [0]
        bslots = {}

        def issue_w(st, dt):
            key = (st["phib"], st["t"] + dt)
            if key in wins_issued:
                return
            wins_issued.add(key)
            k = st["t"] + dt - st["koff"]
            e.lds(f"ds_read_b128 {v(WIN+4*k,4)}, {v(vA)} offset:{2*st['phib'] + 16*(st['t']+dt)}", f"W{key}")

        def issue_b(n):
            st = steps[n]
            for (J, acc, first) in st["jobs"]:
                slot = nb[0] % 6
                nb[0] += 1
                bslots[(n, J)] = slot
                t = st["t"]
                off = 272 * (8 * (1 - J) + st["phib"] // 128) + 16 * (t & 15) + 272 * (t >> 4)
                e.lds(f"ds_read_b128 {v(BR+4*slot,4)}, {v(vB)} offset:{off}", f"B{n}_{J}")

        for dt in range(3):
            issue_w(steps[0], dt)
        issue_b(0)
        if len(steps) > 1:
            issue_w(steps[1], 2)
            issue_b(1)
        for n, st in enumerate(steps):
            k = st["t"] - st["koff"]
            nxt = steps[n + 2] if n + 2 < len(steps) else None
            cnt = 0
            for (J, acc, first) in st["jobs"]:
                slot = bslots[(n, J)]
                e.wait_lg(f"B{n}_{J}", f"W{(st['phib'], st['t'])}", f"W{(st['phib'], st['t']+1)}")
                for i in range(4):
                    if i == 3 or (i == 2):
                        pass
                    if i == 3:
                        e.wait_lg(f"W{(st['phib'], st['t']+2)}")
                    src = "0" if first else v(acc + 4 * i, 4)
                    e.I(f"v_mfma_f32_16x16x32_bf16 {v(acc+4*i,4)}, {v(WIN+4*k+2*i,4)}, {v(BR+4*slot,4)}, {src}")
                    cnt += 1
                    if nxt is not None and cnt == 1:
                        for dt in range(3):
                            issue_w(nxt, dt)
                    if nxt is not None and cnt == 2:
                        issue_b(n + 2)
                    if hook is not None:
                        hook(name, n, cnt)

    la = e.newlabel("cvB")
    lj = e.newlabel("cvJ")
    e.I(f"s_cmp_eq_u32 {s(sSH)}, 0")
    e.I(f"s_cbranch_scc0 {la}")
    snap = e.snapshot()
    steps = []
    for t in range(32):
        jobs = [(0, ACC0, t == 0)]
        if t < 16:
            jobs.append((1, ACC1, t == 0))
        steps.append(dict(phib=0, t=t, koff=0, jobs=jobs))
    run(steps, "A")
    e.I(f"s_lshl_b32 {s(sT0)}, {s(sFH)}, 12")
    e.I(f"s_add_u32 {s(sT0)}, {s(sT0)}, {JX}")
    e.I(f"v_lshl_add_u32 v202, v1, 4, {s(sT0)}")
    for i in range(4):
        e.lds(f"ds_write_b128 v202, {v(ACC1+4*i,4)} offset:{1024*i}", "jx")
    e.wait_lg_all()
    e.I("s_barrier")
    snapA = e.snapshot()
    e.I(f"s_branch {lj}")
    e.restore(snap)
    e.label(la)
    e.I("s_nop 7")
    steps = []
    for t in range(16, 32):
        steps.append(dict(phib=0, t=t, koff=16, jobs=[(1, ACC1, t == 16)]))
    for t in range(32):
        steps.append(dict(phib=1024, t=t, koff=0, jobs=[(1, ACC1, False)]))
    run(steps, "B")
    e.I(f"s_lshl_b32 {s(sT0)}, {s(sFH)}, 12")
    e.I(f"s_add_u32 {s(sT0)}, {s(sT0)}, {JX}")
    e.I(f"v_lshl_add_u32 v202, v1, 4, {s(sT0)}")
    e.wait_lg_all()
    e.I("s_barrier")
    for i in range(4):
        e.lds(f"ds_read_b128 {v(ACC0+4*i,4)}, v202 offset:{1024*i}", f"jr{i}")
    for i in range(4):
        e.wait_lg(f"jr{i}")
        for r in range(4):
            e.I(f"v_add_f32 {v(ACC0+4*i+r)}, {v(ACC0+4*i+r)}, {v(ACC1+4*i+r)}")
    assert e.snapshot()[0] == snapA[0], "VMEM order differs between the conv roles"
    e.label(lj)
    e.I("s_nop 7")
    e.lg.ops = []
    e.I(f"s_mul_i32 {s(sT0)}, {s(sW)}, 2304")
    e.I(f"s_add_u32 {s(sT0)}, {s(sT0)}, {YL}")
    e.I("v_bfe_u32 v203, v1, 1, 3")
    e.I("v_mul_u32_u24 v203, 272, v203")
    e.I("v_lshrrev_b32 v204, 4, v1")
    e.I("v_lshl_add_u32 v203, v204, 6, v203")
    e.I("v_and_b32 v205, 1, v1")
    e.I("v_lshl_add_u32 v203, v205, 2, v203")
    e.I(f"v_add_u32 v203, {s(sT0)}, v203")
    for i in range(4):
        for b in range(2):
            e.I(f"v_cvt_pk_bf16_f32 {v(40+2*i+b)}, {v(ACC0+4*i+2*b)}, {v(ACC0+4*i+2*b+1)}")
    for i in range(4):
        for b in range(2):
            e.lds(f"ds_write_b32 v203, {v(40+2*i+b)} offset:{32*b + 8*i}", "yw")
    e.I("v_add_u32 v204, v204, v1")
    e.I(f"v_lshl_add_u32 v204, v204, 4, {s(sT0)}")
    e.wait_lg("yw")
    for n in range(2):
        e.lds(f"ds_read_b128 {v(48+4*n,4)}, v204 offset:{1088*n}", f"yr{n}")
    e.I(f"s_lshl_b32 {s(sT0)}, {s(sCH)}, 12")
    e.I(f"s_lshl_b32 {s(sT1)}, {s(sSH)}, 11")
    e.I(f"s_add_u32 {s(sT0)}, {s(sT0)}, {s(sT1)}")
    e.I(f"s_add_u32 {s(sT0)}, {s(sT0)}, {YT}")
    e.I("v_lshlrev_b32 v205, 4, v1")
    for n in range(2):
        e.wait_lg(f"yr{n}")
        e.vmem(f"buffer_store_dwordx4 {v(48+4*n,4)}, v205, {s(rWS,4)}, {s(sT0)} offen offset:{1024*n} sc1", "yst")


def conv(g):
    e = g.e
    conv_h_loads(g)
    conv_u_loads(g)
    conv_h_patch(g)
    g.stamp()
    conv_main(g)
    e.wait_vm_all()
    e.I("s_barrier")
    g.signal(FLAGC)


def w2_setup(g):
    e = g.e
    e.I("v_and_b32 v202, 7, v1")
    e.I("v_bfe_u32 v203, v1, 4, 1")
    e.I("v_lshlrev_b32 v203, 2, v203")
    e.I("v_xor_b32 v202, v202, v203")
    e.I("v_lshlrev_b32 v202, 4, v202")
    e.I("v_lshrrev_b32 v203, 3, v1")
    e.I("v_lshl_or_b32 v232, v203, 10, v202")
    e.I("v_lshrrev_b32 v202, 5, v1")
    e.I("v_bfe_u32 v203, v1, 2, 2")
    e.I("v_lshl_add_u32 v202, v202, 2, v203")
    e.I("v_lshlrev_b32 v202, 7, v202")
    e.I("v_bfe_u32 v203, v1, 3, 1")
    e.I(f"v_xor_b32 v203, {s(sFH)}, v203")
    e.I("v_lshl_or_b32 v202, v203, 6, v202")
    e.I("v_bfe_u32 v203, v1, 4, 1")
    e.I("v_lshl_or_b32 v202, v203, 5, v202")
    e.I("v_and_b32 v203, 3, v1")
    e.I("v_lshl_or_b32 v202, v203, 3, v202")
    e.I(f"s_lshl_b32 {s(sT0)}, {s(sW)}, 13")
    e.I(f"s_add_u32 {s(sT0)}, {s(sT0)}, {W2S}")
    e.I(f"v_add_u32 v233, {s(sT0)}, v202")
    e.I("v_xor_b32 v234, 64, v233")
    e.I(f"s_mov_b32 {s(sXoff)}, {s(sT0)}")
    e.I(f"s_mul_i32 {s(sWoff)}, {s(sW)}, {448*1024}")
    e.I(f"s_lshl_b32 {s(sT0)}, {s(sDk)}, 7")
    e.I(f"s_add_u32 {s(sWoff)}, {s(sWoff)}, {s(sT0)}")


def w2_ops(g):
    e = g.e
    ops = []

    def dma(t, hh):
        def f():
            e.I(f"s_add_u32 {s(sT5)}, {s(sWoff)}, {(16*t + 8*hh)*1024}")
            e.I(f"s_add_u32 m0, {s(sXoff)}, {(t%4)*2048 + 1024*hh}")
            e.vmem(f"buffer_load_dwordx4 v232, {s(rW2,4)}, {s(sT5)} offen lds", f"w2d{t}")
        return f

    def rd(t, db, h):
        def f():
            e.wait_vm(f"w2d{t}")
            e.lds(f"ds_read_b64_tr_b16 {a((2*t+db)*4+2*h,2)}, {v(233+db)} offset:{(t%4)*2048 + 1024*h}", f"w2r{t}")
        return f

    def free(t):
        def f():
            e.wait_lg(f"w2r{t}")
        return f

    for t in range(4):
        ops += [dma(t, 0), dma(t, 1)]
    for t in range(28):
        ops += [rd(t, 0, 0), rd(t, 0, 1), rd(t, 1, 0), rd(t, 1, 1)]
        if t + 4 < 28:
            ops += [free(t), dma(t + 4, 0), dma(t + 4, 1)]
    ops.append(free(27))
    return ops


def gemm2(g):
    e = g.e
    ACC, RING, DEPTH = 64, 128, 8
    w2_setup(g)
    for f in w2_ops(g):
        f()
    g.stamp()

    def setupB():
        e.I(f"s_lshr_b32 {s(sT2)}, {s(sR)}, 1")
        e.I(f"s_and_b32 {s(sT3)}, {s(sT2)}, 3")
        e.I(f"s_mul_i32 {s(sT3)}, {s(sT3)}, 7")
        e.I(f"s_lshr_b32 {s(sT2)}, {s(sT2)}, 2")
        e.I(f"s_lshl_b32 {s(sT2)}, {s(sT2)}, 1")
        e.I("v_min_u32 v250, 13, v1")
        e.I("v_cmp_lt_u32 vcc, 6, v250")
        e.I("v_cndmask_b32 v251, 0, 1, vcc")
        e.I("v_mul_u32_u24 v252, 7, v251")
        e.I("v_sub_u32 v250, v250, v252")
        e.I(f"v_add_u32 v250, {s(sT3)}, v250")
        e.I("v_lshl_add_u32 v250, v250, 3, v251")
        e.I(f"v_add_u32 v250, {s(sT2)}, v250")
        e.I("v_lshlrev_b32 v250, 7, v250")
        e.I(f"v_add_u32 v250, {FLAGB}, v250")
    g.poll(setupB)
    e.I(f"s_lshl_b32 {s(sT0)}, {s(sR)}, 1")
    e.I(f"s_add_u32 {s(sT1)}, {s(sT0)}, {s(sSH)}")
    e.I(f"s_xor_b32 {s(sT2)}, {s(sT1)}, 1")
    e.I(f"s_mul_i32 {s(sT3)}, {s(sW)}, 28")
    for (dst, src) in ((sACTo, sT1), (sACTo2, sT2)):
        e.I(f"s_mul_i32 {s(dst)}, {s(src)}, 112")
        e.I(f"s_add_u32 {s(dst)}, {s(dst)}, {s(sT3)}")
        e.I(f"s_lshl_b32 {s(dst)}, {s(dst)}, 10")
        e.I(f"s_add_u32 {s(dst)}, {s(dst)}, {ACT}")
    e.I("v_lshlrev_b32 v235, 4, v1")

    def ld(t):
        r = RING + 8 * (t % DEPTH)
        for sb, so in ((0, sACTo), (1, sACTo2)):
            if t % 4 == 0 and t > 0:
                e.I(f"s_add_u32 {s(so)}, {s(so)}, 4096")
            e.vmem(f"buffer_load_dwordx4 {v(r+4*sb,4)}, v235, {s(rWS,4)}, {s(so)} offen offset:{1024*(t%4)} sc1", f"act{t}")

    for t in range(DEPTH - 1):
        ld(t)
    for t in range(28):
        r = RING + 8 * (t % DEPTH)
        e.wait_vm(f"act{t}")
        for db in range(2):
            for sb in range(2):
                c = ACC + 16 * (2 * db + sb)
                src = "0" if t == 0 else v(c, 16)
                e.I(f"v_mfma_f32_32x32x16_bf16 {v(c,16)}, {a((2*t+db)*4,4)}, {v(r+4*sb,4)}, {src}")
                if db == 0 and sb == 0 and t + DEPTH - 1 < 28:
                    ld(t + DEPTH - 1)
    g.stamp()
    for aa in range(1, 4):
        e.I(f"s_xor_b32 {s(sT0)}, {s(sW)}, {aa}")
        e.I(f"s_mul_i32 {s(sT0)}, {s(sT0)}, 3")
        e.I(f"s_add_u32 {s(sT0)}, {s(sT0)}, {aa-1}")
        e.I(f"s_lshl_b32 {s(sT0)}, {s(sT0)}, 12")
        e.I(f"v_lshl_add_u32 {v(8+aa)}, v1, 4, {s(sT0)}")
    for aa in range(1, 4):
        for jq in range(4):
            e.lds(f"ds_write_b128 {v(8+aa)}, {v(ACC+16*aa+4*jq,4)} offset:{RED + 1024*jq}", "redw")
    e.I(f"s_mul_i32 {s(sT0)}, {s(sW)}, {3*4096}")
    e.I(f"v_lshl_add_u32 v8, v1, 4, {s(sT0)}")
    e.wait_lg_all()

    def setupC():
        e.I("v_and_b32 v250, 31, v1")
        e.I(f"s_lshl_b32 {s(sT2)}, {s(sDk)}, 5")
        e.I(f"v_add_u32 v250, {s(sT2)}, v250")
        e.I("v_lshlrev_b32 v250, 7, v250")
        e.I(f"v_add_u32 v250, {FLAGC}, v250")
    g.poll(setupC)
    e.I("v_lshrrev_b32 v12, 3, v1")
    e.I("v_and_b32 v13, 7, v1")
    e.I("v_lshlrev_b32 v14, 12, v12")
    e.I("v_lshl_or_b32 v14, v13, 4, v14")
    e.I(f"s_lshl_b32 {s(sT0)}, {s(sDk)}, 18")
    e.I(f"s_lshl_b32 {s(sT1)}, {s(sW)}, 16")
    e.I(f"s_add_u32 {s(sT0)}, {s(sT0)}, {s(sT1)}")
    e.I(f"s_lshl_b32 {s(sT1)}, {s(sR)}, 7")
    e.I(f"s_add_u32 {s(sT0)}, {s(sT0)}, {s(sT1)}")
    e.I(f"s_add_u32 {s(sT0)}, {s(sT0)}, {YT}")
    e.vmem(f"buffer_load_dwordx4 v[16:19], v14, {s(rWS,4)}, {s(sT0)} offen sc1", "y0")
    e.I(f"s_add_u32 {s(sT0)}, {s(sT0)}, 32768")
    e.vmem(f"buffer_load_dwordx4 v[20:23], v14, {s(rWS,4)}, {s(sT0)} offen sc1", "y1")
    e.I("v_and_b32 v24, 31, v1")
    e.I("v_lshrrev_b32 v25, 5, v1")
    e.I(f"s_lshl_b32 {s(sT0)}, {s(sR)}, 9")
    e.I(f"s_lshl_b32 {s(sT1)}, {s(sSH)}, 8")
    e.I(f"s_add_u32 {s(sT0)}, {s(sT0)}, {s(sT1)}")
    e.I(f"s_add_u32 {s(sT0)}, {s(sT0)}, {STATS}")
    e.I("v_lshlrev_b32 v26, 3, v24")
    e.vmem(f"buffer_load_dwordx2 v[28:29], v26, {s(rWS,4)}, {s(sT0)} offen sc1", "fst")
    e.I(f"s_lshl_b32 {s(sT0)}, {s(sDk)}, 7")
    e.I(f"s_lshl_b32 {s(sT1)}, {s(sFH)}, 6")
    e.I(f"s_add_u32 {s(sT0)}, {s(sT0)}, {s(sT1)}")
    e.I(f"v_lshl_add_u32 v26, v25, 3, {s(sT0)}")
    for j4 in range(4):
        e.vmem(f"global_load_dwordx2 {v(32+2*j4,2)}, v26, {s(pD,2)} offset:{16*j4}", "fd")
    for m in range(3):
        for jq in range(4):
            e.lds(f"ds_read_b128 {v(80+16*m+4*jq,4)}, v8 offset:{RED + 4096*m + 1024*jq}", f"redr{m}{jq}")
    for m in range(3):
        for jq in range(4):
            e.wait_lg(f"redr{m}{jq}")
            for r in range(0, 4, 2):
                e.I(f"v_pk_add_f32 {v(ACC+4*jq+r,2)}, {v(ACC+4*jq+r,2)}, {v(80+16*m+4*jq+r,2)}")
    e.I("v_bfe_u32 v14, v1, 4, 1")
    e.I("v_lshlrev_b32 v14, 2, v14")
    e.I("v_xor_b32 v14, v14, v13")
    e.I("v_lshlrev_b32 v14, 4, v14")
    e.I("v_lshl_or_b32 v14, v12, 7, v14")
    e.I(f"s_lshl_b32 {s(sT0)}, {s(sW)}, 11")
    e.I(f"s_add_u32 {s(sT0)}, {s(sT0)}, {YS}")
    e.I(f"v_add_u32 v14, {s(sT0)}, v14")
    e.wait_vm("y0")
    e.lds("ds_write_b128 v14, v[16:19]", "ysw")
    e.wait_vm("y1")
    e.lds("ds_write_b128 v14, v[20:23] offset:1024", "ysw")
    e.I("v_bfe_u32 v15, v1, 1, 3")
    e.I(f"s_lshl_b32 {s(sT0)}, {s(sFH)}, 2")
    e.I(f"v_xor_b32 v15, {s(sT0)}, v15")
    e.I("v_lshlrev_b32 v15, 4, v15")
    e.I("v_lshl_or_b32 v15, v25, 3, v15")
    e.I("v_lshl_or_b32 v15, v24, 7, v15")
    e.I(f"s_lshl_b32 {s(sT0)}, {s(sSH)}, 12")
    e.I(f"v_add_u32 v15, {s(sT0)}, v15")
    for j4 in range(4):
        e.I(f"v_xor_b32 {v(40+j4)}, {16*j4}, v15")
        e.I(f"v_add_u32 {v(44+j4)}, {OT}, {v(40+j4)}")
        e.I(f"v_add_u32 {v(40+j4)}, {KVS}, {v(40+j4)}")
    for j4 in range(4):
        e.lds(f"ds_read_b64 {v(128+2*j4,2)}, {v(40+j4)}", f"kv{j4}")
        e.lds(f"ds_read_b64 {v(136+2*j4,2)}, {v(40+j4)} offset:{XT-KVS}", f"x{j4}")
    e.I("v_bfe_u32 v16, v1, 2, 2")
    e.I("v_lshl_add_u32 v16, v25, 2, v16")
    e.I(f"s_lshl_b32 {s(sT0)}, {s(sFH)}, 5")
    e.I(f"v_add_u32 v16, {s(sT0)}, v16")
    e.I("v_lshlrev_b32 v16, 7, v16")
    e.I("v_bfe_u32 v17, v1, 3, 1")
    e.I(f"v_xor_b32 v17, {s(sSH)}, v17")
    e.I("v_lshl_or_b32 v16, v17, 6, v16")
    e.I("v_bfe_u32 v17, v1, 4, 1")
    e.I("v_lshl_or_b32 v16, v17, 5, v16")
    e.I("v_and_b32 v17, 3, v1")
    e.I("v_lshl_or_b32 v16, v17, 3, v16")
    e.I(f"v_add_u32 v16, {YS}, v16")
    e.wait_lg_all()
    e.I("s_barrier")
    for j4 in range(4):
        e.lds(f"ds_read_b64_tr_b16 {v(144+2*j4,2)}, v16 offset:{1024*j4}", f"yt{j4}")
    e.wait_vm("fst", "fd")
    e.I("v_mul_f32 v30, v28, v29")
    e.I("v_sub_f32 v30, 0, v30")
    e.I("v_mov_b32 v31, v30")
    e.I("v_mov_b32 v28, v29")
    e.I(f"s_mov_b32 {s(sT0)}, {LN2:#x}")
    e.I(f"s_mov_b32 {s(sT1)}, {LN2:#x}")
    for j4 in range(4):
        c = ACC + 4 * j4
        X, Y, K, D_, E, O = 152, 156, 160, 164, 168, 172

        def unpack(dst, src):
            e.I(f"v_lshlrev_b32 {v(dst)}, 16, {v(src)}")
            e.I(f"v_and_b32 {v(dst+1)}, 0xffff0000, {v(src)}")
            e.I(f"v_lshlrev_b32 {v(dst+2)}, 16, {v(src+1)}")
            e.I(f"v_and_b32 {v(dst+3)}, 0xffff0000, {v(src+1)}")
        for k in range(4):
            e.I(f"v_exp_f32 {v(E+k)}, -{v(c+k)}")
        e.wait_lg(f"yt{j4}")
        unpack(X, 136 + 2 * j4)
        unpack(Y, 144 + 2 * j4)
        unpack(K, 128 + 2 * j4)
        unpack(D_, 32 + 2 * j4)
        for k in range(0, 4, 2):
            e.I(f"v_pk_add_f32 {v(E+k,2)}, {v(E+k,2)}, 1.0 op_sel_hi:[1,0]")
        for k in range(4):
            e.I(f"v_rcp_f32 {v(E+k)}, {v(E+k)}")
        for k in range(0, 4, 2):
            e.I(f"v_pk_fma_f32 {v(Y+k,2)}, {v(K+k,2)}, {v(D_+k,2)}, {v(Y+k,2)}")
            e.I(f"v_pk_fma_f32 {v(K+k,2)}, {v(X+k,2)}, v[28:29], v[30:31]")
            e.I(f"v_pk_mul_f32 {v(c+k,2)}, {v(c+k,2)}, {s(sT0,2)}")
        for k in range(0, 4, 2):
            e.I(f"v_pk_mul_f32 {v(Y+k,2)}, {v(Y+k,2)}, {v(K+k,2)}")
            e.I(f"v_pk_mul_f32 {v(c+k,2)}, {v(c+k,2)}, {v(E+k,2)}")
        for k in range(0, 4, 2):
            e.I(f"v_pk_fma_f32 {v(X+k,2)}, {v(Y+k,2)}, {v(c+k,2)}, {v(X+k,2)}")
        e.I(f"v_cvt_pk_bf16_f32 {v(O+2*(j4&1))}, {v(X)}, {v(X+1)}")
        e.I(f"v_cvt_pk_bf16_f32 {v(O+2*(j4&1)+1)}, {v(X+2)}, {v(X+3)}")
        e.lds(f"ds_write_b64 {v(44+j4)}, {v(O+2*(j4&1),2)}", "ow")
    e.I("v_lshrrev_b32 v9, 4, v1")
    e.I("v_xor_b32 v10, v13, v9")
    e.I("v_xor_b32 v11, 4, v10")
    e.I("v_lshlrev_b32 v12, 10, v12")
    e.I("v_lshl_or_b32 v10, v10, 4, v12")
    e.I("v_lshl_or_b32 v11, v11, 4, v12")
    e.I(f"s_lshl_b32 {s(sT0)}, {s(sW)}, 11")
    e.I(f"s_add_u32 {s(sT0)}, {s(sT0)}, {OT}")
    e.I(f"v_lshl_add_u32 v9, v1, 4, {s(sT0)}")
    e.wait_lg_all()
    e.I("s_barrier")
    e.lds("ds_read_b128 v[16:19], v9", "o0")
    e.lds("ds_read_b128 v[20:23], v9 offset:1024", "o1")
    e.I(f"s_lshl_b32 {s(sT0)}, {s(sR)}, 16")
    e.I(f"s_lshl_b32 {s(sT1)}, {s(sDk)}, 7")
    e.I(f"s_add_u32 {s(sT0)}, {s(sT0)}, {s(sT1)}")
    e.I(f"s_lshl_b32 {s(sT1)}, {s(sW)}, 14")
    e.I(f"s_add_u32 {s(sT0)}, {s(sT0)}, {s(sT1)}")
    e.wait_lg("o0")
    e.vmem(f"buffer_store_dwordx4 v[16:19], v10, {s(rOUT,4)}, {s(sT0)} offen", "out")
    e.I(f"s_add_u32 {s(sT0)}, {s(sT0)}, 8192")
    e.wait_lg("o1")
    e.vmem(f"buffer_store_dwordx4 v[20:23], v11, {s(rOUT,4)}, {s(sT0)} offen", "out")
```

```python
import sys
import os
sys.path.insert(0, os.path.dirname(os.path.abspath(__file__)))
from asmlib import Emit, v, a, s

NAME = "recurrent_scan__ssm_conv_h3__dense_activation_mish__prompt_kernel"

FLAGA, FLAGB, FLAGC = 0x0, 0x8000, 0x10000
STATS = 0x20000
STAMP = 0x28000
UT = 0x100000
YT = 0x300000
ACT = 0x500000
WS_BYTES = 0xC00000

sW = 3
pQ, pK, pV, pSH, pH, pD, pBX, pW1, pB1, pW2, pOUT, pDBG, pWS = 4, 6, 8, 10, 12, 14, 16, 18, 20, 22, 24, 26, 28
rQ, rK, rV, rH, rW1, rW2, rWS, rOUT, rDBG, rU = 32, 36, 40, 44, 48, 52, 56, 60, 64, 68
sR, sDk, sRB, sFB, sIdx, sM, sXoff, sWoff = 72, 73, 74, 75, 76, 77, 78, 79
sT0, sT1, sT2, sT3, sT4, sT5 = 80, 81, 82, 83, 84, 85
sFH, sSH = 86, 87
sX = 88
sCH = 89
sNON = 90
sEX = 92
sH0 = 94
sPoll = 95
sStamp = 96
sACTo = 98
sACTo2 = 99
sC = 100
sT6 = 101

SLOT = 32768
KBUF = 3 * SLOT
VBUF = KBUF + 9216
KVS = 131072
XT = KVS + 8192
MISC = XT + 8192
CSX = MISC
HC = 0
HC_RHO = 4368
HC_CH = 8960
UR = 18432
UR_P = 6528
UR_CH = 2 * UR_P
W2S = 45056
JX = 77824
YL = 86016
RED = 0
YS = 49152
OT = 57344
LDS_BYTES = 163840

LOG2E = 0x3FB8AA3B
LN2 = 0x3F317218


class Gen:
    def __init__(self, stop_after=None, stamps=False):
        self.e = Emit()
        self.stop_after = stop_after
        self.stamps = stamps
        self.nstamp = 0

    def srd(self, r, p, nbytes):
        e = self.e
        e.I(f"s_mov_b32 {s(r)}, {s(p)}")
        e.I(f"s_mov_b32 {s(r+1)}, {s(p+1)}")
        e.I(f"s_mov_b32 {s(r+2)}, {nbytes}")
        e.I(f"s_mov_b32 {s(r+3)}, 0x00020000")

    def stamp(self):
        if not self.stamps:
            return
        e = self.e
        k = self.nstamp
        self.nstamp += 1
        lab = e.newlabel("stamp")
        e.I(f"s_cmp_lg_u32 {s(sW)}, 0")
        e.I(f"s_cbranch_scc1 {lab}")
        e.I(f"s_memrealtime {s(sStamp,2)}")
        e.I("s_waitcnt lgkmcnt(0)")
        e.I(f"v_mov_b32 v254, {s(sStamp)}")
        e.I(f"s_lshl_b32 {s(sStamp+1)}, s2, 7")
        e.I(f"s_add_u32 {s(sStamp+1)}, {s(sStamp+1)}, {STAMP + 4*k}")
        e.I(f"v_mov_b32 v255, {s(sStamp+1)}")
        e.vmem(f"buffer_store_dword v254, v255, {s(rWS,4)}, 0 offen", "stamp", opt=True)
        e.label(lab)

    def dma(self, voff, srd, soff, m0expr, tag, extra=""):
        e = self.e
        sreg, imm = m0expr
        if sreg is None:
            e.I(f"s_mov_b32 m0, {imm}")
        else:
            e.I(f"s_add_u32 m0, {s(sreg)}, {imm}")
        e.vmem(f"buffer_load_dwordx4 {v(voff)}, {s(srd,4)}, {soff} offen {extra}lds", tag)

    def wave0_only(self):
        lab = self.e.newlabel("w0")
        self.e.I(f"s_cmp_lg_u32 {s(sW)}, 0")
        self.e.I(f"s_cbranch_scc1 {lab}")
        return lab

    def get_nonce(self):
        e = self.e
        lab = self.wave0_only()
        loop = e.newlabel("nonce")
        done = e.newlabel("nonce_done")
        e.I(f"s_mov_b32 {s(sPoll)}, 0")
        e.I("v_mov_b32 v250, 0")
        e.label(loop)
        e.I(f"buffer_load_dwordx2 v[252:253], v250, {s(rDBG,4)}, 0 offen sc1")
        e.I("s_waitcnt vmcnt(0)")
        e.I(f"v_readfirstlane_b32 {s(sNON)}, v252")
        e.I(f"v_readfirstlane_b32 {s(sNON+1)}, v253")
        e.I(f"s_add_u32 {s(sPoll)}, {s(sPoll)}, 1")
        e.I(f"s_cmp_ge_u32 {s(sPoll)}, 0x40000")
        e.I(f"s_cbranch_scc1 {done}")
        e.I(f"s_cmp_eq_u32 {s(sNON)}, 0")
        e.I(f"s_cbranch_scc1 {loop}")
        e.label(done)
        e.label(lab)

    def signal(self, flagbase):
        e = self.e
        lab = self.wave0_only()
        e.I(f"s_lshl_b32 {s(sT0)}, s2, 7")
        e.I(f"s_add_u32 {s(sT0)}, {s(sT0)}, {flagbase}")
        e.I(f"v_mov_b32 v250, {s(sT0)}")
        e.I(f"v_mov_b32 v252, {s(sNON)}")
        e.I(f"v_mov_b32 v253, {s(sNON+1)}")
        e.I(f"s_mov_b64 {s(sEX,2)}, exec")
        e.I("s_mov_b64 exec, 1")
        e.vmem(f"buffer_store_dwordx2 v[252:253], v250, {s(rWS,4)}, 0 offen sc1", "flag", opt=True)
        e.I(f"s_mov_b64 exec, {s(sEX,2)}")
        e.label(lab)

    def poll(self, voff_setup):
        e = self.e
        lab = self.wave0_only()
        voff_setup()
        loop = e.newlabel("poll")
        done = e.newlabel("poll_done")
        e.I(f"s_mov_b32 {s(sPoll)}, 0")
        e.label(loop)
        e.I(f"buffer_load_dwordx2 v[252:253], v250, {s(rWS,4)}, 0 offen sc1")
        e.I("s_waitcnt vmcnt(0)")
        e.I(f"v_cmp_ne_u32 vcc, {s(sNON)}, v252")
        e.I(f"v_cmp_ne_u32 {s(sEX,2)}, {s(sNON+1)}, v253")
        e.I(f"s_or_b64 vcc, vcc, {s(sEX,2)}")
        e.I(f"s_add_u32 {s(sPoll)}, {s(sPoll)}, 1")
        e.I(f"s_cmp_ge_u32 {s(sPoll)}, 0x40000")
        e.I(f"s_cbranch_scc1 {done}")
        e.I("s_cmp_eq_u64 vcc, 0")
        e.I(f"s_cbranch_scc0 {loop}")
        e.label(done)
        e.label(lab)
        e.I("s_barrier")

    def prologue(self):
        e = self.e
        e.I("s_cmp_ge_u32 s2, 256")
        e.I("s_cbranch_scc0 L_start")
        e.I("s_endpgm")
        e.label("L_start")
        e.I(f"s_load_dwordx16 {s(4,16)}, s[0:1], 0")
        e.I(f"s_load_dwordx8 {s(20,8)}, s[0:1], 64")
        e.I(f"s_load_dwordx2 {s(28,2)}, s[0:1], 96")
        e.I("v_and_b32 v1, 63, v0")
        e.I("v_lshrrev_b32 v2, 6, v0")
        e.I(f"s_and_b32 {s(sX)}, s2, 7")
        e.I(f"s_lshr_b32 {s(sIdx)}, s2, 3")
        e.I(f"v_readfirstlane_b32 {s(sW)}, v2")
        e.I(f"s_and_b32 {s(sT0)}, {s(sIdx)}, 3")
        e.I(f"s_lshl_b32 {s(sR)}, {s(sX)}, 2")
        e.I(f"s_add_u32 {s(sR)}, {s(sR)}, {s(sT0)}")
        e.I(f"s_lshr_b32 {s(sDk)}, {s(sIdx)}, 2")
        e.I(f"s_mul_i32 {s(sT0)}, {s(sIdx)}, 37")
        e.I(f"s_lshr_b32 {s(sT0)}, {s(sT0)}, 8")
        e.I(f"s_mul_i32 {s(sT1)}, {s(sT0)}, 7")
        e.I(f"s_sub_u32 {s(sT1)}, {s(sIdx)}, {s(sT1)}")
        e.I(f"s_lshr_b32 {s(sRB)}, {s(sX)}, 1")
        e.I(f"s_lshl_b32 {s(sRB)}, {s(sRB)}, 2")
        e.I(f"s_add_u32 {s(sRB)}, {s(sRB)}, {s(sT0)}")
        e.I(f"s_and_b32 {s(sFB)}, {s(sX)}, 1")
        e.I(f"s_mul_i32 {s(sFB)}, {s(sFB)}, 7")
        e.I(f"s_add_u32 {s(sFB)}, {s(sFB)}, {s(sT1)}")
        e.I(f"s_lshl_b32 {s(sM)}, {s(sW)}, 12")
        e.I(f"s_lshr_b32 {s(sFH)}, {s(sW)}, 1")
        e.I(f"s_and_b32 {s(sSH)}, {s(sW)}, 1")
        e.I("s_waitcnt lgkmcnt(0)")
        self.srd(rK, pK, 2097152)
        self.srd(rV, pV, 2097152)
        self.srd(rQ, pQ, 2097152)
        self.srd(rW1, pW1, 1835008)
        self.srd(rWS, pWS, WS_BYTES)
        self.srd(rDBG, pDBG, 256)
        self.srd(rW2, pW2, 1835008)
        self.srd(rOUT, pOUT, 2097152)
        self.stamp()
        lab = e.newlabel("nononce")
        e.I(f"s_or_b32 {s(sT0)}, s2, {s(sW)}")
        e.I(f"s_cmp_lg_u32 {s(sT0)}, 0")
        e.I(f"s_cbranch_scc1 {lab}")
        e.I(f"s_memrealtime {s(sNON,2)}")
        e.I("s_waitcnt lgkmcnt(0)")
        e.I(f"s_or_b32 {s(sNON)}, {s(sNON)}, 1")
        e.I(f"v_mov_b32 v252, {s(sNON)}")
        e.I(f"v_mov_b32 v253, {s(sNON+1)}")
        e.I("v_mov_b32 v250, 0")
        e.I(f"s_mov_b64 {s(sEX,2)}, exec")
        e.I("s_mov_b64 exec, 1")
        e.vmem(f"buffer_store_dwordx2 v[252:253], v250, {s(rDBG,4)}, 0 offen sc1", "nonce", opt=True)
        e.I(f"s_mov_b64 exec, {s(sEX,2)}")
        e.label(lab)

    def code_prefetch(self):
        e = self.e
        lab = e.newlabel("nopf")
        e.I(f"s_getpc_b64 {s(sT2,2)}")
        e.label("L_pcbase")
        e.I(f"s_lshl_b32 {s(sT0)}, {s(sIdx)}, 1")
        e.I(f"s_add_u32 {s(sT0)}, {s(sT0)}, {s(sW)}")
        e.I(f"s_lshl_b32 {s(sT0)}, {s(sT0)}, 10")
        e.I(f"s_cmp_ge_u32 {s(sW)}, 2")
        e.I(f"s_cbranch_scc1 {lab}")
        e.I(f"s_add_u32 {s(sT1)}, {s(sT0)}, 1024")
        e.I(f"s_cmp_gt_u32 {s(sT1)}, L_codeend-L_pcbase")
        e.I(f"s_cbranch_scc1 {lab}")
        e.I(f"v_lshl_add_u32 v249, v1, 4, {s(sT0)}")
        e.vmem(f"global_load_dwordx4 v[244:247], v249, {s(sT2,2)}", "pf", opt=True)
        e.label(lab)

    def p0_loads(self):
        e = self.e
        e.I("v_lshrrev_b32 v2, 3, v1")
        e.I("v_and_b32 v3, 7, v1")
        e.I("v_lshlrev_b32 v2, 10, v2")
        e.I("v_lshl_or_b32 v2, v3, 4, v2")
        e.I(f"s_lshl_b32 {s(sT0)}, {s(sR)}, 16")
        e.I(f"s_lshl_b32 {s(sT1)}, {s(sDk)}, 7")
        e.I(f"s_add_u32 {s(sT0)}, {s(sT0)}, {s(sT1)}")
        e.I(f"v_add_u32 v4, {s(sT0)}, v2")
        e.I("v_subrev_u32 v5, 8192, v4")
        lab = self.wave0_only()
        e.I(f"s_mov_b32 m0, {KBUF}")
        e.vmem(f"buffer_load_dwordx4 v5, {s(rK,4)}, 0 offen lds", "p0k", opt=True)
        e.label(lab)
        e.I(f"s_lshl_b32 {s(sT2)}, {s(sW)}, 14")
        e.I(f"s_lshl_b32 {s(sT3)}, {s(sW)}, 11")
        for n in range(2):
            e.I(f"s_add_u32 {s(sT4)}, {s(sT2)}, {8192*n}")
            self.dma(4, rK, s(sT4), (sT3, KBUF + 1024 + 1024 * n), "p0k")
        for n in range(2):
            e.I(f"s_add_u32 {s(sT4)}, {s(sT2)}, {8192*n}")
            self.dma(4, rV, s(sT4), (sT3, VBUF + 1024 * n), "p0v")
        e.I("v_and_b32 v6, 31, v1")
        e.I(f"s_lshl_b32 {s(sT0)}, {s(sDk)}, 9")
        e.I(f"v_lshl_add_u32 v7, v6, 4, {s(sT0)}")
        e.vmem(f"global_load_dwordx4 v[28:31], v7, {s(pSH,2)}", "p0w")
        e.I(f"s_lshl_b32 {s(sT0)}, s2, 13")
        e.I(f"s_lshl_b32 {s(sT1)}, {s(sW)}, 11")
        e.I(f"s_add_u32 {s(sT0)}, {s(sT0)}, {s(sT1)}")
        e.I("v_lshlrev_b32 v8, 4, v1")
        e.vmem(f"buffer_load_dwordx4 v[224:227], v8, {s(rQ,4)}, {s(sT0)} offen", "p0x")
        e.vmem(f"buffer_load_dwordx4 v[228:231], v8, {s(rQ,4)}, {s(sT0)} offen offset:1024", "p0x")
        e.I("v_lshrrev_b32 v9, 4, v1")
        e.I("v_xor_b32 v10, v3, v9")
        e.I("v_xor_b32 v11, 4, v10")
        e.I("v_lshrrev_b32 v12, 3, v1")
        e.I("v_lshlrev_b32 v12, 10, v12")
        e.I("v_lshl_or_b32 v10, v10, 4, v12")
        e.I("v_lshl_or_b32 v11, v11, 4, v12")
        self.vXT0, self.vXT1 = 10, 11
        e.I(f"s_lshl_b32 {s(sT0)}, {s(sR)}, 16")
        e.I(f"s_lshl_b32 {s(sT1)}, {s(sDk)}, 7")
        e.I(f"s_add_u32 {s(sT0)}, {s(sT0)}, {s(sT1)}")
        e.I(f"s_add_u32 {s(sT0)}, {s(sT0)}, {s(sT2)}")
        self.dma(10, rQ, s(sT0), (sT3, XT), "xt")
        e.I(f"s_add_u32 {s(sT0)}, {s(sT0)}, 8192")
        self.dma(11, rQ, s(sT0), (sT3, XT + 1024), "xt")

    def g1_setup(self):
        e = self.e
        vXe, vXo, vWd = 180, 181, 182
        e.I("v_lshrrev_b32 v12, 3, v1")
        e.I("v_and_b32 v13, 7, v1")
        e.I("v_lshrrev_b32 v14, 4, v1")
        e.I("v_xor_b32 v15, v13, v14")
        e.I("v_xor_b32 v16, 4, v15")
        e.I("v_lshlrev_b32 v12, 10, v12")
        e.I(f"v_lshl_or_b32 {v(vXe)}, v15, 4, v12")
        e.I(f"v_lshl_or_b32 {v(vXo)}, v16, 4, v12")
        e.I("v_lshrrev_b32 v12, 4, v1")
        e.I("v_and_b32 v13, 15, v1")
        e.I("v_lshrrev_b32 v14, 2, v13")
        e.I("v_xor_b32 v14, v14, v12")
        e.I("v_and_b32 v13, 3, v13")
        e.I("v_lshlrev_b32 v13, 4, v13")
        e.I("v_lshl_or_b32 v13, v14, 6, v13")
        e.I("v_mul_u32_u24 v12, 3584, v12")
        e.I(f"v_add_u32 {v(vWd)}, v12, v13")
        e.I(f"s_lshl_b32 {s(sXoff)}, {s(sRB)}, 17")
        e.I(f"s_lshl_b32 {s(sT0)}, {s(sW)}, 15")
        e.I(f"s_add_u32 {s(sXoff)}, {s(sXoff)}, {s(sT0)}")
        e.I(f"s_mul_i32 {s(sWoff)}, {s(sW)}, {16*3584}")
        e.I(f"s_lshl_b32 {s(sT0)}, {s(sFB)}, 8")
        e.I(f"s_add_u32 {s(sWoff)}, {s(sWoff)}, {s(sT0)}")

    def g1_stage_dma_list(self, st):
        e = self.e
        vXe, vXo, vWd = 180, 181, 182
        slot = (st % 4) * SLOT
        out = []
        for n in range(4):
            def fx(n=n):
                e.I(f"s_add_u32 {s(sT5)}, {s(sXoff)}, {st*128 + n*8192}")
                self.dma(vXo if n & 1 else vXe, rQ, s(sT5), (sM, slot + 1024 * n), f"g1s{st}")
            out.append(fx)
        for n in range(4):
            def fw(n=n):
                e.I(f"s_add_u32 {s(sT5)}, {s(sWoff)}, {(st*64 + 4*n)*3584}")
                self.dma(vWd, rW1, s(sT5), (sM, slot + 16384 + 1024 * n), f"g1s{st}")
            out.append(fw)
        return out

    def g1_addr(self):
        e = self.e
        e.I("v_and_b32 v12, 31, v1")
        e.I("v_lshrrev_b32 v13, 5, v1")
        e.I("v_bfe_u32 v14, v1, 1, 3")
        e.I("v_xor_b32 v14, v14, v13")
        e.I("v_lshlrev_b32 v14, 4, v14")
        e.I("v_lshl_or_b32 v14, v12, 7, v14")
        e.I(f"s_lshl_b32 {s(sT0)}, {s(sSH)}, 13")
        e.I(f"v_add_u32 v168, {s(sT0)}, v14")
        for t in range(1, 4):
            e.I(f"v_xor_b32 {v(168+t)}, {32*t}, v168")
        for t in range(4):
            e.I(f"v_add_u32 {v(172+t)}, 0x10000, {v(168+t)}")
        e.I("v_bfe_u32 v12, v1, 2, 2")
        e.I("v_lshl_add_u32 v13, v13, 3, v12")
        e.I("v_lshlrev_b32 v13, 8, v13")
        e.I(f"s_lshl_b32 {s(sT0)}, {s(sFH)}, 1")
        e.I(f"v_xor_b32 v14, {s(sT0)}, v12")
        e.I("v_lshl_or_b32 v13, v14, 6, v13")
        e.I("v_bfe_u32 v14, v1, 4, 1")
        e.I("v_lshl_or_b32 v13, v14, 5, v13")
        e.I("v_and_b32 v14, 3, v1")
        e.I("v_lshl_or_b32 v13, v14, 3, v13")
        e.I("v_add_u32 v176, 16384, v13")
        e.I("v_xor_b32 v177, 64, v176")
        e.I("v_add_u32 v178, 0x10000, v176")
        e.I("v_add_u32 v179, 0x10000, v177")
        e.I("v_and_b32 v12, 7, v1")
        e.I("v_bfe_u32 v13, v1, 4, 1")
        e.I("v_lshlrev_b32 v13, 2, v13")
        e.I("v_cmp_eq_u32 vcc, v12, v13")
        e.I("v_mov_b32 v14, 0x3f803f80")
        e.I("v_cndmask_b32 v164, 0, v14, vcc")
        e.I("v_mov_b32 v165, v164")
        e.I("v_mov_b32 v166, v164")
        e.I("v_mov_b32 v167, v164")
        e.I(f"s_lshl_b32 {s(sT0)}, {s(sFB)}, 8")
        e.I(f"s_lshl_b32 {s(sT1)}, {s(sFH)}, 7")
        e.I(f"s_add_u32 {s(sT0)}, {s(sT0)}, {s(sT1)}")
        e.I("v_and_b32 v12, 31, v1")
        e.I(f"v_lshl_add_u32 v12, v12, 1, {s(sT0)}")
        e.vmem(f"global_load_ushort v184, v12, {s(pB1,2)}", "b1")
        e.vmem(f"global_load_ushort v185, v12, {s(pB1,2)} offset:64", "b1")

    def p0_compute(self):
        e = self.e
        e.I("v_and_b32 v12, 31, v1")
        e.I("v_lshrrev_b32 v13, 5, v1")
        e.I(f"s_lshl_b32 {s(sT0)}, {s(sW)}, 1")
        e.I(f"v_add_u32 v14, {s(sT0)}, v13")
        e.I("v_lshlrev_b32 v15, 10, v14")
        e.I("v_lshl_or_b32 v15, v12, 2, v15")
        e.I(f"v_add_u32 v16, {KBUF + 5*128}, v15")
        e.I(f"v_add_u32 v17, {VBUF}, v15")
        e.wait_vm("p0k", "p0v")
        e.I("s_barrier")
        for i in range(11):
            e.lds(f"ds_read_b32 {v(188+i)}, v16 offset:{128*i}", f"k{i}")
        for i in range(8):
            e.lds(f"ds_read_b32 {v(20+i)}, v17 offset:{128*i}", f"v{i}")
        e.wait_vm("p0w")
        e.I("v_lshlrev_b32 v54, 16, v28")
        e.I("v_lshlrev_b32 v55, 16, v30")
        e.I("v_and_b32 v56, 0xffff0000, v28")
        e.I("v_and_b32 v57, 0xffff0000, v30")
        e.I("v_lshlrev_b32 v58, 16, v29")
        e.I("v_lshlrev_b32 v59, 16, v31")
        e.I("v_and_b32 v60, 0xffff0000, v29")
        e.I("v_and_b32 v61, 0xffff0000, v31")
        for i in range(11):
            e.wait_lg(f"k{i}")
            e.I(f"v_lshlrev_b32 {v(32+2*i)}, 16, {v(188+i)}")
            e.I(f"v_and_b32 {v(33+2*i)}, 0xffff0000, {v(188+i)}")
        for i in range(8):
            e.I(f"v_pk_mul_f32 {v(64+2*i,2)}, {v(32+2*(i+3),2)}, v[54:55]")
        for j in range(1, 4):
            for i in range(8):
                e.I(f"v_pk_fma_f32 {v(64+2*i,2)}, {v(32+2*(i+3-j),2)}, {v(54+2*j,2)}, {v(64+2*i,2)}")
        for i in range(8):
            e.wait_lg(f"v{i}")
            e.I(f"v_lshlrev_b32 {v(80+2*i)}, 16, {v(20+i)}")
            e.I(f"v_and_b32 {v(81+2*i)}, 0xffff0000, {v(20+i)}")
        for i in range(8):
            e.I(f"v_pk_mul_f32 {v(64+2*i,2)}, {v(64+2*i,2)}, {v(80+2*i,2)}")
        for i in range(8):
            e.I(f"v_cvt_pk_bf16_f32 {v(96+i)}, {v(64+2*i)}, {v(65+2*i)}")
        e.I("v_lshrrev_b32 v15, 2, v12")
        e.I("v_lshlrev_b32 v16, 2, v13")
        e.I("v_xor_b32 v15, v15, v16")
        e.I("v_lshlrev_b32 v15, 4, v15")
        e.I("v_and_b32 v16, 3, v12")
        e.I("v_lshl_or_b32 v15, v16, 2, v15")
        e.I("v_lshl_or_b32 v15, v14, 10, v15")
        e.I(f"v_add_u32 v104, {KVS}, v15")
        for k in range(1, 4):
            e.I(f"v_xor_b32 {v(104+k)}, {16*k}, v104")
        for i in range(8):
            e.lds(f"ds_write_b32 {v(104+(i>>1))}, {v(96+i)} offset:{128*i}", "kvw")
        e.wait_vm("p0x")
        for n in range(2):
            e.I(f"v_mov_b32 {v(232+2*n)}, 0")
            e.I(f"v_mov_b32 {v(233+2*n)}, 0")
        for k in range(4):
            for n in range(2):
                e.I(f"v_dot2c_f32_bf16 {v(232+2*n)}, 0x3f803f80, {v(224+4*n+k)}")
                e.I(f"v_dot2c_f32_bf16 {v(233+2*n)}, {v(224+4*n+k)}, {v(224+4*n+k)}")
        for pat in ("row_shr:1", "row_shr:2", "row_shr:4", "row_shr:8"):
            for r in range(232, 236):
                e.I(f"v_add_f32_dpp {v(r)}, {v(r)}, {v(r)} {pat} row_mask:0xf bank_mask:0xf")
        for r in range(232, 236):
            e.I(f"v_add_f32_dpp {v(r)}, {v(r)}, {v(r)} row_bcast:15 row_mask:0xa bank_mask:0xf")
        for r in range(232, 236):
            e.I(f"v_add_f32_dpp {v(r)}, {v(r)}, {v(r)} row_bcast:31 row_mask:0xc bank_mask:0xf")
        e.I(f"s_mov_b32 {s(sC)}, 0x3b000000")
        for n in range(2):
            e.I(f"v_mul_f32 {v(232+2*n)}, {s(sC)}, {v(232+2*n)}")
            e.I(f"v_mul_f32 {v(233+2*n)}, {s(sC)}, {v(233+2*n)}")
        for n in range(2):
            e.I(f"v_fma_f32 {v(233+2*n)}, -{v(232+2*n)}, {v(232+2*n)}, {v(233+2*n)}")
        for n in range(2):
            e.I(f"v_max_f32 {v(233+2*n)}, 0, {v(233+2*n)}")
        for n in range(2):
            e.I(f"v_add_f32 {v(233+2*n)}, 0x3727c5ac, {v(233+2*n)}")
        for n in range(2):
            e.I(f"v_rsq_f32 {v(233+2*n)}, {v(233+2*n)}")
        e.I(f"s_lshl_b32 {s(sT0)}, s2, 6")
        e.I(f"s_lshl_b32 {s(sT1)}, {s(sW)}, 4")
        e.I(f"s_add_u32 {s(sT0)}, {s(sT0)}, {s(sT1)}")
        e.I(f"s_add_u32 {s(sT0)}, {s(sT0)}, {STATS}")
        e.I("v_mov_b32 v236, 0")
        e.I(f"s_mov_b64 {s(sEX,2)}, exec")
        e.I("s_lshl_b64 exec, 1, 63")
        e.vmem(f"buffer_store_dwordx2 v[232:233], v236, {s(rWS,4)}, {s(sT0)} offen sc1", "p0st")
        e.vmem(f"buffer_store_dwordx2 v[234:235], v236, {s(rWS,4)}, {s(sT0)} offen offset:8 sc1", "p0st")
        e.I(f"s_mov_b64 exec, {s(sEX,2)}")
        e.I("v_lshrrev_b32 v12, 4, v1")
        e.I("v_bfe_u32 v13, v1, 2, 2")
        e.I("v_lshl_add_u32 v14, v12, 3, v13")
        e.I("v_sub_u32 v14, 31, v14")
        e.I("v_bfe_u32 v15, v1, 1, 1")
        e.I(f"s_lshl_b32 {s(sT0)}, {s(sW)}, 1")
        e.I(f"v_add_u32 v15, {s(sT0)}, v15")
        e.I("v_and_b32 v16, 1, v1")
        for h in range(2):
            if h:
                e.I("v_subrev_u32 v14, 4, v14")
            e.I("v_bfe_u32 v17, v14, 1, 3")
            e.I("v_xor_b32 v17, v17, v15")
            e.I("v_lshlrev_b32 v17, 4, v17")
            e.I("v_lshl_or_b32 v17, v16, 3, v17")
            e.I("v_lshl_or_b32 v17, v14, 7, v17")
            e.I(f"v_add_u32 {v(108+h)}, {KVS}, v17")
        e.wait_lg("kvw")
        e.I("s_barrier")
        for n in range(2):
            for h in range(2):
                e.lds(f"ds_read_b64_tr_b16 {v(236+4*n+2*h,2)}, {v(108+h)} offset:{4096*(1-n)}", f"tr{n}")
        e.I("v_and_b32 v13, 15, v1")
        e.I("v_lshlrev_b32 v13, 12, v13")
        e.I("v_lshl_or_b32 v13, v12, 4, v13")
        e.I(f"s_lshl_b32 {s(sT0)}, {s(sDk)}, 18")
        e.I(f"s_lshl_b32 {s(sT1)}, {s(sW)}, 16")
        e.I(f"s_add_u32 {s(sT0)}, {s(sT0)}, {s(sT1)}")
        e.I(f"s_lshl_b32 {s(sT1)}, {s(sR)}, 7")
        e.I(f"s_sub_u32 {s(sT0)}, {s(sT0)}, {s(sT1)}")
        e.I(f"s_add_u32 {s(sT0)}, {s(sT0)}, {UT + 2*1984}")
        for n in range(2):
            e.wait_lg(f"tr{n}")
            e.vmem(f"buffer_store_dwordx4 {v(236+4*n,4)}, v13, {s(rWS,4)}, {s(sT0)} offen offset:{64*n} sc1", "p0st")

    def g1_reads(self, T):
        e = self.e
        st, t = divmod(T, 4)
        slot = st % 4
        hi = slot >= 2
        so = (slot & 1) * SLOT
        F = 128 + 16 * (T & 1)
        vA = 178 if hi else 176
        vB = (172 if hi else 168) + t
        A0, A1, B0, B1 = F, F + 4, F + 8, F + 12
        r = []
        r.append(lambda: e.lds(f"ds_read_b64_tr_b16 {v(A0,2)}, {v(vA)} offset:{so + 4096*t}", f"A0_{T}"))
        r.append(lambda: e.lds(f"ds_read_b64_tr_b16 {v(A0+2,2)}, {v(vA)} offset:{so + 4096*t + 1024}", f"A0_{T}"))
        r.append(lambda: e.lds(f"ds_read_b128 {v(B0,4)}, {v(vB)} offset:{so}", f"B0_{T}"))
        r.append(lambda: e.lds(f"ds_read_b128 {v(B1,4)}, {v(vB)} offset:{so + 4096}", f"B1_{T}"))
        r.append(lambda: e.lds(f"ds_read_b64_tr_b16 {v(A1,2)}, {v(vA+1)} offset:{so + 4096*t}", f"A1_{T}"))
        r.append(lambda: e.lds(f"ds_read_b64_tr_b16 {v(A1+2,2)}, {v(vA+1)} offset:{so + 4096*t + 1024}", f"A1_{T}"))
        return r

    def g1_main(self):
        e = self.e
        ACC = 64
        e.wait_vm("g1s0")
        e.wait_lg_all()
        e.I("s_barrier")
        pend = self.g1_stage_dma_list(3)
        for f in self.g1_reads(0):
            f()
        for T in range(32):
            st, t = divmod(T, 4)
            F = 128 + 16 * (T & 1)
            A0, A1, B0, B1 = F, F + 4, F + 8, F + 12
            first = (T == 0)
            nxt = self.g1_reads(T + 1) if T < 31 else []
            boundary = (t == 3 and st < 7)

            def mf(fi, si, A, B):
                c = ACC + 16 * (2 * fi + si)
                src = "0" if first else v(c, 16)
                e.I(f"v_mfma_f32_32x32x16_bf16 {v(c,16)}, {v(A,4)}, {v(B,4)}, {src}")

            def pop_dma():
                if pend:
                    pend.pop(0)()

            e.wait_lg(f"A0_{T}", f"B0_{T}")
            mf(0, 0, A0, B0)
            if boundary:
                e.wait_lg_all()
                e.wait_vm(f"g1s{st+1}")
                e.I("s_barrier")
                if st + 1 == 3:
                    self.signal(FLAGA)
                if st + 4 < 8:
                    pend.extend(self.g1_stage_dma_list(st + 4))
            for f in nxt[:3]:
                f()
            e.wait_lg(f"B1_{T}")
            mf(0, 1, A0, B1)
            for f in nxt[3:]:
                f()
            e.wait_lg(f"A1_{T}")
            mf(1, 0, A1, B0)
            pop_dma()
            mf(1, 1, A1, B1)
            csrc = "0" if first else "v[160:163]"
            l1 = e.newlabel("cs1")
            l2 = e.newlabel("cs2")
            e.I(f"s_cmp_eq_u32 {s(sSH)}, 0")
            e.I(f"s_cbranch_scc0 {l1}")
            e.I(f"v_mfma_f32_16x16x32_bf16 v[160:163], v[164:167], {v(A0,4)}, {csrc}")
            e.I(f"s_branch {l2}")
            e.label(l1)
            e.I(f"v_mfma_f32_16x16x32_bf16 v[160:163], v[164:167], {v(A1,4)}, {csrc}")
            e.label(l2)
            pop_dma()
        assert not pend

    def g1_epilogue(self):
        e = self.e
        ACC = 64
        e.I("v_and_b32 v12, 31, v1")
        e.I(f"s_lshl_b32 {s(sT0)}, {s(sW)}, 7")
        e.I(f"s_add_u32 {s(sT0)}, {s(sT0)}, {CSX}")
        e.I(f"v_lshl_add_u32 v13, v12, 2, {s(sT0)}")
        e.lds("ds_write_b32 v13, v160", "csw")
        e.I(f"s_lshl_b32 {s(sT1)}, {s(sFH)}, 8")
        e.I(f"s_add_u32 {s(sT1)}, {s(sT1)}, {CSX}")
        e.I(f"v_lshl_add_u32 v14, v12, 2, {s(sT1)}")
        self.get_nonce_if_needed()

        def setup():
            e.I("v_and_b32 v250, 15, v1")
            e.I(f"s_lshl_b32 {s(sT2)}, {s(sRB)}, 4")
            e.I(f"v_add_u32 v250, {s(sT2)}, v250")
            e.I("v_lshlrev_b32 v250, 7, v250")
            if FLAGA:
                e.I(f"v_add_u32 v250, {FLAGA}, v250")
        e.wait_lg_all()
        self.poll(setup)
        e.lds("ds_read_b32 v16, v14", "cs0")
        e.lds("ds_read_b32 v17, v14 offset:128", "cs1")
        e.I(f"s_lshl_b32 {s(sT0)}, {s(sRB)}, 10")
        e.I(f"s_lshl_b32 {s(sT1)}, {s(sSH)}, 9")
        e.I(f"s_add_u32 {s(sT0)}, {s(sT0)}, {s(sT1)}")
        e.I(f"s_add_u32 {s(sT0)}, {s(sT0)}, {STATS}")
        e.I("v_lshlrev_b32 v15, 3, v12")
        e.vmem(f"buffer_load_dwordx2 v[18:19], v15, {s(rWS,4)}, {s(sT0)} offen sc1", "st")
        e.vmem(f"buffer_load_dwordx2 v[20:21], v15, {s(rWS,4)}, {s(sT0)} offen offset:256 sc1", "st")
        e.I("v_cmp_gt_u32 vcc, 32, v1")
        e.wait_vm("b1")
        for fi in range(2):
            e.wait_lg(f"cs{fi}")
            cs = 16 + fi
            b = 184 + fi
            P = 128 + 4 * fi
            e.I(f"v_cvt_pk_bf16_f32 {v(P)}, {v(cs)}, {v(cs)}")
            e.I(f"v_and_b32 v22, 0xffff0000, {v(P)}")
            e.I(f"v_sub_f32 v23, {v(cs)}, v22")
            e.I(f"v_cvt_pk_bf16_f32 v23, v23, v23")
            e.I(f"v_and_b32 v23, 0xffff, v23")
            e.I(f"v_lshl_or_b32 {v(P+1)}, {v(b)}, 16, v23")
            e.I(f"v_mov_b32 {v(P+2)}, {v(b)}")
            e.I(f"v_mov_b32 {v(P+3)}, 0")
        e.wait_vm("st")
        for si in range(2):
            mu, rs = 18 + 2 * si, 19 + 2 * si
            P = 136 + 4 * si
            e.I(f"v_rcp_f32 v22, {v(rs)}")
            e.I(f"v_sub_f32 v23, 0, {v(mu)}")
            e.I(f"v_cvt_pk_bf16_f32 v24, v23, v22")
            e.I("v_lshlrev_b32 v25, 16, v24")
            e.I("v_and_b32 v26, 0xffff0000, v24")
            e.I("v_sub_f32 v25, v23, v25")
            e.I("v_sub_f32 v26, v22, v26")
            e.I("v_cvt_pk_bf16_f32 v27, v25, v26")
            e.I("v_and_b32 v28, 0xffff, v24")
            e.I("v_lshl_or_b32 v28, v27, 16, v28")
            e.I("v_lshrrev_b32 v27, 16, v27")
            e.I(f"v_cndmask_b32 {v(P)}, 0, v28, vcc")
            e.I(f"v_cndmask_b32 {v(P+1)}, 0, v24, vcc")
            e.I(f"v_cndmask_b32 {v(P+2)}, 0, v27, vcc")
            e.I(f"v_mov_b32 {v(P+3)}, 0")
            e.I(f"v_mul_f32 {v(30+2*si)}, {LOG2E:#x}, {v(rs)}")
            e.I(f"v_mov_b32 {v(31+2*si)}, {v(30+2*si)}")
        for fi in range(2):
            for si in range(2):
                c = ACC + 16 * (2 * fi + si)
                e.I(f"v_mfma_f32_32x32x16_bf16 {v(c,16)}, {v(128+4*fi,4)}, {v(136+4*si,4)}, {v(c,16)}")
        e.I(f"s_lshl_b32 {s(sT0)}, {s(sRB)}, 2")
        e.I(f"s_lshl_b32 {s(sT1)}, {s(sSH)}, 1")
        e.I(f"s_add_u32 {s(sT0)}, {s(sT0)}, {s(sT1)}")
        e.I(f"s_mul_i32 {s(sT0)}, {s(sT0)}, 112")
        e.I(f"s_lshl_b32 {s(sT1)}, {s(sFB)}, 3")
        e.I(f"s_add_u32 {s(sT0)}, {s(sT0)}, {s(sT1)}")
        e.I(f"s_lshl_b32 {s(sT1)}, {s(sFH)}, 2")
        e.I(f"s_add_u32 {s(sT0)}, {s(sT0)}, {s(sT1)}")
        e.I(f"s_lshl_b32 {s(sT0)}, {s(sT0)}, 10")
        e.I(f"s_add_u32 {s(sACTo)}, {s(sT0)}, {ACT}")
        e.I(f"s_add_u32 {s(sACTo2)}, {s(sACTo)}, {112*1024}")
        e.I("v_lshlrev_b32 v34, 4, v1")
        for fi in range(2):
            for si in range(2):
                c = ACC + 16 * (2 * fi + si)
                cc = 30 + 2 * si
                for half in range(2):
                    b = c + 8 * half
                    T_ = 36
                    O_ = 44 + 4 * ((2 * si + half) & 1)
                    for k in range(0, 8, 2):
                        e.I(f"v_pk_mul_f32 {v(b+k,2)}, {v(b+k,2)}, {v(cc,2)}")
                    for k in range(8):
                        e.I(f"v_exp_f32 {v(T_+k)}, {v(b+k)}")
                    for k in range(0, 8, 2):
                        e.I(f"v_pk_add_f32 {v(T_+k,2)}, {v(T_+k,2)}, 1.0 op_sel_hi:[1,0]")
                    for k in range(0, 8, 2):
                        e.I(f"v_pk_fma_f32 {v(T_+k,2)}, {v(T_+k,2)}, {v(T_+k,2)}, 1.0 op_sel_hi:[1,1,0]")
                    for k in range(8):
                        e.I(f"v_rcp_f32 {v(T_+k)}, {v(T_+k)}")
                    for k in range(0, 8, 2):
                        e.I(f"v_pk_fma_f32 {v(T_+k,2)}, {v(T_+k,2)}, -2.0, 1.0 op_sel_hi:[1,0,0]")
                    for k in range(0, 8, 2):
                        e.I(f"v_pk_mul_f32 {v(b+k,2)}, {v(b+k,2)}, {v(T_+k,2)}")
                    for k in range(4):
                        e.I(f"v_cvt_pk_bf16_f32 {v(O_+k)}, {v(b+2*k)}, {v(b+2*k+1)}")
                    so = sACTo2 if si else sACTo
                    e.vmem(f"buffer_store_dwordx4 {v(O_,4)}, v34, {s(rWS,4)}, {s(so)} offen offset:{1024*(2*fi+half)} sc1", "act")

    def get_nonce_if_needed(self):
        pass

    def build(self):
        e = self.e
        self.prologue()
        self.code_prefetch()
        self.p0_loads()
        nog1 = "L_nog1"
        self.g1_setup()
        for st in range(3):
            for f in self.g1_stage_dma_list(st):
                f()
        self.g1_addr()
        self.stamp()
        self.p0_compute()
        self.get_nonce()
        self.stamp()
        e.I(f"s_cmp_ge_u32 {s(sIdx)}, 28")
        e.I(f"s_cbranch_scc1 {nog1}")
        snap = e.snapshot()
        self.g1_main()
        self.stamp()
        self.g1_epilogue()
        e.wait_vm_all()
        e.I("s_barrier")
        self.signal(FLAGB)
        e.I("s_branch L_g1done")
        e.restore(snap)
        e.label(nog1)
        e.wait_all()
        e.I("s_barrier")
        self.signal(FLAGA)
        e.label("L_g1done")
        e.vm.ops = [("flag", True)]
        e.lg.ops = []
        self.stamp()
        if self.stop_after == "g1":
            return self.finish()
        import phases2
        phases2.conv(self)
        self.stamp()
        if self.stop_after == "cv":
            return self.finish()
        phases2.gemm2(self)
        self.stamp()
        return self.finish()

    def finish(self):
        e = self.e
        e.I("s_waitcnt vmcnt(0) lgkmcnt(0)")
        e.I("s_endpgm")
        e.label("L_codeend")
        body = e.text()
        head = open(os.path.join(os.path.dirname(os.path.abspath(__file__)), "header.txt")).read()
        out = head
        out += f"; @launch grid=(256,1,1) block=(256,1,1) lds={LDS_BYTES}\n"
        out += '.amdgcn_target "amdgcn-amd-amdhsa--gfx950"\n.text\n'
        out += f".globl {NAME}\n.p2align 8\n.type {NAME},@function\n{NAME}:\n"
        out += body
        out += f""".section .rodata,"a"
.p2align 6
.amdhsa_kernel {NAME}
  .amdhsa_next_free_vgpr 512
  .amdhsa_next_free_sgpr 102
  .amdhsa_accum_offset 256
  .amdhsa_group_segment_fixed_size 0
  .amdhsa_kernarg_size 104
  .amdhsa_user_sgpr_count 2
  .amdhsa_user_sgpr_kernarg_segment_ptr 1
  .amdhsa_system_sgpr_workgroup_id_x 1
.end_amdhsa_kernel
"""
        return out


if __name__ == "__main__":
    out = sys.argv[1]
    stop = None
    stamps = False
    for x in sys.argv[2:]:
        if x.startswith("stop="):
            stop = x[5:]
        if x == "stamps":
            stamps = True
    g = Gen(stop_after=stop, stamps=stamps)
    open(out, "w").write(g.build())
```

```python
import sys
import os
sys.path.insert(0, os.path.dirname(os.path.abspath(__file__)))
from asmlib import Emit, v, a, s

NAME = "recurrent_scan__ssm_conv_h3__dense_activation_mish__prompt_kernel"

FLAGA, FLAGB, FLAGC, FLAGD = 0x0, 0x8000, 0x10000, 0x18000
STATS = 0x20000
STAMP = 0x28000
UT = 0x100000
YT = 0x300000
ACT = 0x500000
W2F = 0xC00000
WS_BYTES = 0xE00000

sW = 3
pQ, pK, pV, pSH, pH, pD, pBX, pW1, pB1, pW2, pOUT, pDBG, pWS = 4, 6, 8, 10, 12, 14, 16, 18, 20, 22, 24, 26, 28
rQ, rK, rV, rH, rW1, rW2, rWS, rOUT, rDBG, rU = 32, 36, 40, 44, 48, 52, 56, 60, 64, 68
sR, sDk, sRB, sFB, sIdx, sM, sXoff, sWoff = 72, 73, 74, 75, 76, 77, 78, 79
sT0, sT1, sT2, sT3, sT4, sT5 = 80, 81, 82, 83, 84, 85
sFH, sSH = 86, 87
sX = 88
sCH = 89
sNON = 90
sEX = 92
sKO = 94
sPoll = 95
sStamp = 96
sACTo = 98
sACTo2 = 99
sC = 100
sT6 = 101
sXs, sWs = 30, 31
sW2a, sW2b = 16, 17
sHP = 4
sG2a, sG2b = 8, 9

SLOT = 32768
KBUF = 3 * SLOT
VBUF = KBUF + 9216
KVS = 131072
XT = KVS + 8192
MISC = XT + 8192
CSX = MISC
HC = 0
HC_RHO = 4368
HC_CH = 8960
UR = 18432
UR_P = 6528
UR_CH = 2 * UR_P
JX = 45056
YL = 53248
W2S = 0
RED = 65536
YS = 114688
OT = 122880
LDS_BYTES = 163840

LOG2E = 0x3FB8AA3B
LN2 = 0x3F317218

vFLAG = 250


class Queue:
    def __init__(self, ops=()):
        self.ops = list(ops)
        self.n = 0

    def pop(self, k=1):
        for _ in range(k):
            if self.ops:
                self.ops.pop(0)()
                self.n += 1

    def drain(self):
        self.pop(len(self.ops))


class Gen:
    def __init__(self, stamps=0, opts=()):
        self.e = Emit()
        self.stamps = stamps
        self.nstamp = 0
        self.stamp_names = []
        self.opts = set(opts)

    def srd(self, r, p, nbytes):
        e = self.e
        e.I(f"s_mov_b32 {s(r)}, {s(p)}")
        e.I(f"s_mov_b32 {s(r+1)}, {s(p+1)}")
        e.I(f"s_mov_b32 {s(r+2)}, {nbytes}")
        e.I(f"s_mov_b32 {s(r+3)}, 0x00020000")

    def stamp(self, name="", level=1):
        if not self.stamps or level > self.stamps:
            return
        e = self.e
        if name in self.stamp_names:
            k = self.stamp_names.index(name)
        else:
            k = len(self.stamp_names)
            self.stamp_names.append(name)
        e.I(f"{'s_memtime' if ('clk' in self.opts and k > 0) else 's_memrealtime'} {s(sStamp,2)}")
        e.I("s_waitcnt lgkmcnt(0)")
        e.lg.ops = []
        e.I(f"v_mov_b32 v254, {s(sStamp)}")
        e.I(f"s_lshl_b32 {s(sStamp+1)}, s2, 2")
        e.I(f"s_add_u32 {s(sStamp+1)}, {s(sStamp+1)}, {s(sW)}")
        e.I(f"s_lshl_b32 {s(sStamp+1)}, {s(sStamp+1)}, 7")
        e.I(f"s_add_u32 {s(sStamp+1)}, {s(sStamp+1)}, {STAMP + 4*k}")
        e.I(f"v_mov_b32 v255, {s(sStamp+1)}")
        e.vmem(f"buffer_store_dword v254, v255, {s(rWS,4)}, 0 offen", "stamp")

    def dma(self, voff, srd, soff, m0expr, tag, extra=""):
        e = self.e
        sreg, imm = m0expr
        if sreg is None:
            e.I(f"s_mov_b32 m0, {imm}")
        else:
            e.I(f"s_add_u32 m0, {s(sreg)}, {imm}")
        e.vmem(f"buffer_load_dwordx4 {v(voff)}, {s(srd,4)}, {soff} offen {extra}lds", tag)

    def wave0_only(self):
        lab = self.e.newlabel("w0")
        self.e.I(f"s_cmp_lg_u32 {s(sW)}, 0")
        self.e.I(f"s_cbranch_scc1 {lab}")
        return lab

    def w0_wait_vm(self, tag):
        r = self.e.vm.need(tag)
        if r is not None:
            self.e.I(f"s_waitcnt vmcnt({r[0]})")

    def nonce_issue(self):
        e = self.e
        lab = self.wave0_only()
        e.I("v_mov_b32 v251, 0")
        e.vmem(f"buffer_load_dwordx2 v[248:249], v251, {s(rDBG,4)}, 0 offen sc1", "nonce_ld", opt=True)
        e.label(lab)

    def nonce_check_inner(self):
        e = self.e
        loop = e.newlabel("nonce")
        done = e.newlabel("nonce_done")
        self.w0_wait_vm("nonce_ld")
        e.I(f"s_mov_b32 {s(sPoll)}, 0")
        e.label(loop)
        e.I(f"v_readfirstlane_b32 {s(sNON)}, v248")
        e.I(f"v_readfirstlane_b32 {s(sNON+1)}, v249")
        e.I(f"s_add_u32 {s(sPoll)}, {s(sPoll)}, 1")
        e.I(f"s_cmp_ge_u32 {s(sPoll)}, 0x40000")
        e.I(f"s_cbranch_scc1 {done}")
        e.I(f"s_cmp_lg_u32 {s(sNON)}, 0")
        e.I(f"s_cbranch_scc1 {done}")
        e.I(f"buffer_load_dwordx2 v[248:249], v251, {s(rDBG,4)}, 0 offen sc1")
        e.I("s_waitcnt vmcnt(0)")
        e.I(f"s_branch {loop}")
        e.label(done)

    def signal(self, flagoff_setup, need_nonce=False):
        e = self.e
        lab = self.wave0_only()
        if need_nonce:
            self.nonce_check_inner()
        flagoff_setup()
        e.I(f"v_mov_b32 v247, {s(sT0)}")
        e.I(f"v_mov_b32 v244, {s(sNON)}")
        e.I(f"v_mov_b32 v245, {s(sNON+1)}")
        e.I(f"s_mov_b64 {s(sEX,2)}, exec")
        e.I("s_mov_b64 exec, 1")
        e.vmem(f"buffer_store_dwordx2 v[244:245], v247, {s(rWS,4)}, 0 offen sc1", "flag", opt=True)
        e.I(f"s_mov_b64 exec, {s(sEX,2)}")
        e.label(lab)

    def own_flag(self, base):
        def f():
            e = self.e
            e.I(f"s_lshl_b32 {s(sT0)}, s2, 7")
            if base:
                e.I(f"s_add_u32 {s(sT0)}, {s(sT0)}, {base}")
        return f

    def poll_issue(self, setup, tag):
        e = self.e
        lab = self.wave0_only()
        setup()
        e.vmem(f"buffer_load_dwordx2 v[252:253], v250, {s(rWS,4)}, 0 offen sc1", tag, opt=True)
        e.label(lab)

    def poll_check(self, tag):
        e = self.e
        lab = self.wave0_only()
        loop = e.newlabel("poll")
        done = e.newlabel("poll_done")
        self.w0_wait_vm(tag)
        e.I(f"s_mov_b32 {s(sPoll)}, 0")
        e.label(loop)
        e.I(f"v_cmp_ne_u32 vcc, {s(sNON)}, v252")
        e.I(f"v_cmp_ne_u32 {s(sEX,2)}, {s(sNON+1)}, v253")
        e.I(f"s_or_b64 vcc, vcc, {s(sEX,2)}")
        e.I(f"s_cmp_eq_u64 vcc, 0")
        e.I(f"s_cbranch_scc1 {done}")
        e.I(f"s_add_u32 {s(sPoll)}, {s(sPoll)}, 1")
        e.I(f"s_cmp_ge_u32 {s(sPoll)}, 0x40000")
        e.I(f"s_cbranch_scc1 {done}")
        e.I(f"buffer_load_dwordx2 v[252:253], v250, {s(rWS,4)}, 0 offen sc1")
        e.I("s_waitcnt vmcnt(0)")
        e.I(f"s_branch {loop}")
        e.label(done)
        e.label(lab)

    def prologue(self):
        e = self.e
        e.I("s_cmp_ge_u32 s2, 256")
        e.I("s_cbranch_scc0 L_start")
        e.I("s_endpgm")
        e.label("L_start")
        e.I(f"s_load_dwordx16 {s(4,16)}, s[0:1], 0")
        e.I(f"s_load_dwordx8 {s(20,8)}, s[0:1], 64")
        e.I(f"s_load_dwordx2 {s(28,2)}, s[0:1], 96")
        e.I("v_and_b32 v1, 63, v0")
        e.I("v_lshrrev_b32 v2, 6, v0")
        e.I("v_mov_b32 v250, 0")
        e.I("v_mov_b32 v251, 0")
        e.I(f"s_and_b32 {s(sX)}, s2, 7")
        e.I(f"s_lshr_b32 {s(sIdx)}, s2, 3")
        e.I(f"v_readfirstlane_b32 {s(sW)}, v2")
        e.I(f"s_and_b32 {s(sT0)}, {s(sIdx)}, 3")
        e.I(f"s_lshl_b32 {s(sR)}, {s(sX)}, 2")
        e.I(f"s_add_u32 {s(sR)}, {s(sR)}, {s(sT0)}")
        e.I(f"s_lshr_b32 {s(sDk)}, {s(sIdx)}, 2")
        e.I(f"s_mul_i32 {s(sT0)}, {s(sIdx)}, 37")
        e.I(f"s_lshr_b32 {s(sT0)}, {s(sT0)}, 8")
        e.I(f"s_mul_i32 {s(sT1)}, {s(sT0)}, 7")
        e.I(f"s_sub_u32 {s(sT1)}, {s(sIdx)}, {s(sT1)}")
        e.I(f"s_lshr_b32 {s(sRB)}, {s(sX)}, 1")
        e.I(f"s_lshl_b32 {s(sRB)}, {s(sRB)}, 2")
        e.I(f"s_add_u32 {s(sRB)}, {s(sRB)}, {s(sT0)}")
        e.I(f"s_and_b32 {s(sFB)}, {s(sX)}, 1")
        e.I(f"s_mul_i32 {s(sFB)}, {s(sFB)}, 7")
        e.I(f"s_add_u32 {s(sFB)}, {s(sFB)}, {s(sT1)}")
        e.I(f"s_lshl_b32 {s(sKO)}, {s(sT0)}, 1")
        e.I(f"s_add_u32 {s(sKO)}, {s(sKO)}, {s(sT1)}")
        if "norot" in self.opts:
            e.I(f"s_mov_b32 {s(sKO)}, 0")
        e.I(f"s_lshl_b32 {s(sM)}, {s(sW)}, 12")
        e.I(f"s_lshr_b32 {s(sFH)}, {s(sW)}, 1")
        e.I(f"s_and_b32 {s(sSH)}, {s(sW)}, 1")
        e.I(f"s_lshl_b32 {s(sCH)}, s2, 1")
        e.I(f"s_add_u32 {s(sCH)}, {s(sCH)}, {s(sFH)}")
        e.I("v_lshrrev_b32 v2, 3, v1")
        e.I("v_and_b32 v3, 7, v1")
        e.I("v_lshlrev_b32 v2, 10, v2")
        e.I("v_lshl_or_b32 v2, v3, 4, v2")
        e.I(f"s_lshl_b32 {s(sT2)}, {s(sR)}, 16")
        e.I(f"s_lshl_b32 {s(sT3)}, {s(sDk)}, 7")
        e.I(f"s_add_u32 {s(sT2)}, {s(sT2)}, {s(sT3)}")
        e.I(f"v_add_u32 v4, {s(sT2)}, v2")
        e.I("v_subrev_u32 v5, 8192, v4")
        e.I("s_waitcnt lgkmcnt(0)")
        self.srd(rK, pK, 2097152)
        self.srd(rV, pV, 2097152)
        self.srd(rQ, pQ, 2097152)
        self.stamp_ok = False

    def late_srds(self):
        self.srd(rW1, pW1, 1835008)
        self.srd(rWS, pWS, WS_BYTES)
        self.srd(rDBG, pDBG, 256)
        self.srd(rW2, pW2, 1835008)
        self.srd(rOUT, pOUT, 2097152)
        e = self.e
        e.I(f"s_lshl_b32 {s(sT0)}, {s(sCH)}, 12")
        e.I(f"s_add_u32 {s(rH)}, {s(pH)}, {s(sT0)}")
        e.I(f"s_addc_u32 {s(rH+1)}, {s(pH+1)}, 0")
        e.I(f"s_mov_b32 {s(rH+2)}, 4096")
        e.I(f"s_mov_b32 {s(rH+3)}, 0x00020000")
        e.I(f"s_load_dwordx2 {s(sHP,2)}, {s(rH,2)}, 0")

    def nonce_publish(self):
        e = self.e
        lab = e.newlabel("nononce")
        e.I(f"s_or_b32 {s(sT0)}, s2, {s(sW)}")
        e.I(f"s_cmp_lg_u32 {s(sT0)}, 0")
        e.I(f"s_cbranch_scc1 {lab}")
        e.I(f"s_memrealtime {s(sNON,2)}")
        e.I("s_waitcnt lgkmcnt(0)")
        e.I(f"s_or_b32 {s(sNON)}, {s(sNON)}, 1")
        e.I(f"v_mov_b32 v244, {s(sNON)}")
        e.I(f"v_mov_b32 v245, {s(sNON+1)}")
        e.I("v_mov_b32 v246, 0")
        e.I(f"s_mov_b64 {s(sEX,2)}, exec")
        e.I("s_mov_b64 exec, 1")
        e.vmem(f"buffer_store_dwordx2 v[244:245], v246, {s(rDBG,4)}, 0 offen sc1", "nonce", opt=True)
        e.I(f"s_mov_b64 exec, {s(sEX,2)}")
        e.label(lab)

    def code_prefetch(self):
        e = self.e
        lab = e.newlabel("nopf")
        e.I(f"s_getpc_b64 {s(sT2,2)}")
        e.label("L_pcbase")
        e.I(f"s_lshl_b32 {s(sT0)}, {s(sIdx)}, 1")
        e.I(f"s_add_u32 {s(sT0)}, {s(sT0)}, {s(sW)}")
        e.I(f"s_lshl_b32 {s(sT0)}, {s(sT0)}, 10")
        e.I(f"s_cmp_ge_u32 {s(sW)}, 2")
        e.I(f"s_cbranch_scc1 {lab}")
        e.I(f"s_add_u32 {s(sT1)}, {s(sT0)}, 1024")
        e.I(f"s_cmp_gt_u32 {s(sT1)}, L_codeend-L_pcbase")
        e.I(f"s_cbranch_scc1 {lab}")
        e.I(f"v_lshl_add_u32 v239, v1, 4, {s(sT0)}")
        e.vmem(f"global_load_dwordx4 v[240:243], v239, {s(sT2,2)}", "pf", opt=True)
        e.label(lab)

    def p0_loads(self):
        e = self.e
        lab = self.wave0_only()
        e.I(f"s_mov_b32 m0, {KBUF}")
        e.vmem(f"buffer_load_dwordx4 v5, {s(rK,4)}, 0 offen lds", "p0k", opt=True)
        e.label(lab)
        e.I(f"s_lshl_b32 {s(sT2)}, {s(sW)}, 14")
        e.I(f"s_lshl_b32 {s(sT3)}, {s(sW)}, 11")
        e.I(f"s_add_u32 {s(sT4)}, {s(sT2)}, 8192")
        self.dma(4, rK, s(sT2), (sT3, KBUF + 1024), "p0k")
        self.dma(4, rK, s(sT4), (sT3, KBUF + 2048), "p0k")
        self.dma(4, rV, s(sT2), (sT3, VBUF), "p0v")
        self.dma(4, rV, s(sT4), (sT3, VBUF + 1024), "p0v")
        e.I("v_and_b32 v6, 31, v1")
        e.I(f"s_lshl_b32 {s(sT0)}, {s(sDk)}, 9")
        e.I(f"v_lshl_add_u32 v7, v6, 4, {s(sT0)}")
        e.vmem(f"global_load_dwordx4 v[28:31], v7, {s(pSH,2)}", "p0w")
        e.I(f"s_lshl_b32 {s(sT0)}, s2, 13")
        e.I(f"s_lshl_b32 {s(sT1)}, {s(sW)}, 11")
        e.I(f"s_add_u32 {s(sT0)}, {s(sT0)}, {s(sT1)}")
        e.I("v_lshlrev_b32 v8, 4, v1")
        e.vmem(f"buffer_load_dwordx4 v[224:227], v8, {s(rQ,4)}, {s(sT0)} offen", "p0x")
        e.vmem(f"buffer_load_dwordx4 v[228:231], v8, {s(rQ,4)}, {s(sT0)} offen offset:1024", "p0x")

    def xt_ops(self, va=10, vb=11):
        e = self.e

        def f0():
            e.I(f"v_and_b32 {v(va)}, 7, v1")
            e.I(f"v_lshrrev_b32 {v(vb)}, 4, v1")
            e.I(f"v_xor_b32 {v(va)}, {v(va)}, {v(vb)}")
            e.I(f"v_lshrrev_b32 {v(vb)}, 3, v1")
            e.I(f"v_lshlrev_b32 {v(vb)}, 10, {v(vb)}")
            e.I(f"v_lshl_or_b32 {v(va)}, {v(va)}, 4, {v(vb)}")
            e.I(f"v_xor_b32 {v(vb)}, 64, {v(va)}")
            e.I(f"s_lshl_b32 {s(sT0)}, {s(sR)}, 16")
            e.I(f"s_lshl_b32 {s(sT1)}, {s(sDk)}, 7")
            e.I(f"s_add_u32 {s(sT0)}, {s(sT0)}, {s(sT1)}")
            e.I(f"s_lshl_b32 {s(sT1)}, {s(sW)}, 14")
            e.I(f"s_add_u32 {s(sT0)}, {s(sT0)}, {s(sT1)}")
            e.I(f"s_lshl_b32 {s(sT3)}, {s(sW)}, 11")
            self.dma(va, rQ, s(sT0), (sT3, XT), "xt")
            e.I(f"s_add_u32 {s(sT0)}, {s(sT0)}, 8192")
            self.dma(vb, rQ, s(sT0), (sT3, XT + 1024), "xt")
        return [f0]

    def g1_setup(self):
        e = self.e
        vXe, vXo, vWd = 180, 181, 182
        e.I("v_lshrrev_b32 v12, 3, v1")
        e.I("v_and_b32 v13, 7, v1")
        e.I("v_lshrrev_b32 v14, 4, v1")
        e.I("v_xor_b32 v15, v13, v14")
        e.I("v_lshlrev_b32 v12, 10, v12")
        e.I(f"v_lshl_or_b32 {v(vXe)}, v15, 4, v12")
        e.I(f"v_xor_b32 {v(vXo)}, 64, {v(vXe)}")
        e.I("v_and_b32 v13, 15, v1")
        e.I("v_lshrrev_b32 v15, 2, v13")
        e.I("v_xor_b32 v15, v15, v14")
        e.I("v_and_b32 v13, 3, v13")
        e.I("v_lshlrev_b32 v13, 4, v13")
        e.I("v_lshl_or_b32 v13, v15, 6, v13")
        e.I("v_mul_u32_u24 v12, 3584, v14")
        e.I(f"v_add_u32 {v(vWd)}, v12, v13")
        e.I(f"s_lshl_b32 {s(sXoff)}, {s(sRB)}, 17")
        e.I(f"s_lshl_b32 {s(sT0)}, {s(sW)}, 15")
        e.I(f"s_add_u32 {s(sXoff)}, {s(sXoff)}, {s(sT0)}")
        e.I(f"s_mul_i32 {s(sWoff)}, {s(sW)}, {16*3584}")
        e.I(f"s_lshl_b32 {s(sT0)}, {s(sFB)}, 8")
        e.I(f"s_add_u32 {s(sWoff)}, {s(sWoff)}, {s(sT0)}")

    def g1_stage_ops(self, st):
        e = self.e
        vXe, vXo, vWd = 180, 181, 182
        slot = (st % 4) * SLOT
        out = []

        def head():
            e.I(f"s_add_u32 {s(sT5)}, {s(sKO)}, {st}")
            e.I(f"s_and_b32 {s(sT5)}, {s(sT5)}, 7")
            e.I(f"s_lshl_b32 {s(sXs)}, {s(sT5)}, 7")
            e.I(f"s_add_u32 {s(sXs)}, {s(sXs)}, {s(sXoff)}")
            e.I(f"s_mul_i32 {s(sWs)}, {s(sT5)}, {64*3584}")
            e.I(f"s_add_u32 {s(sWs)}, {s(sWs)}, {s(sWoff)}")
        for n in range(4):
            def fx(n=n):
                if n == 0:
                    head()
                    self.dma(vXe, rQ, s(sXs), (sM, slot), f"g1s{st}")
                else:
                    e.I(f"s_add_u32 {s(sT5)}, {s(sXs)}, {n*8192}")
                    self.dma(vXo if n & 1 else vXe, rQ, s(sT5), (sM, slot + 1024 * n), f"g1s{st}")
            out.append(fx)
        for n in range(4):
            def fw(n=n):
                if n == 0:
                    self.dma(vWd, rW1, s(sWs), (sM, slot + 16384), f"g1s{st}")
                else:
                    e.I(f"s_add_u32 {s(sT5)}, {s(sWs)}, {4*n*3584}")
                    self.dma(vWd, rW1, s(sT5), (sM, slot + 16384 + 1024 * n), f"g1s{st}")
            out.append(fw)
        return out

    def g1_addr(self):
        e = self.e
        e.I("v_and_b32 v12, 31, v1")
        e.I("v_lshrrev_b32 v13, 5, v1")
        e.I("v_bfe_u32 v14, v1, 1, 3")
        e.I("v_xor_b32 v14, v14, v13")
        e.I("v_lshlrev_b32 v14, 4, v14")
        e.I("v_lshl_or_b32 v14, v12, 7, v14")
        e.I(f"s_lshl_b32 {s(sT0)}, {s(sSH)}, 13")
        e.I(f"v_add_u32 v168, {s(sT0)}, v14")
        for t in range(1, 4):
            e.I(f"v_xor_b32 {v(168+t)}, {32*t}, v168")
        for t in range(4):
            e.I(f"v_add_u32 {v(172+t)}, 0x10000, {v(168+t)}")
        e.I("v_bfe_u32 v12, v1, 2, 2")
        e.I("v_lshl_add_u32 v13, v13, 3, v12")
        e.I("v_lshlrev_b32 v13, 8, v13")
        e.I(f"v_xor_b32 v14, {s(sW)}, v12")
        e.I("v_lshl_or_b32 v13, v14, 6, v13")
        e.I("v_bfe_u32 v14, v1, 4, 1")
        e.I("v_lshl_or_b32 v13, v14, 5, v13")
        e.I("v_and_b32 v14, 3, v1")
        e.I("v_lshl_or_b32 v13, v14, 3, v13")
        e.I("v_add_u32 v176, 16384, v13")
        e.I("v_xor_b32 v177, 64, v176")
        e.I("v_add_u32 v178, 0x10000, v176")
        e.I("v_add_u32 v179, 0x10000, v177")
        e.I("v_and_b32 v12, 7, v1")
        e.I("v_bfe_u32 v13, v1, 4, 1")
        e.I("v_lshlrev_b32 v13, 2, v13")
        e.I("v_cmp_eq_u32 vcc, v12, v13")
        e.I("v_mov_b32 v14, 0x3f803f80")
        e.I("v_cndmask_b32 v164, 0, v14, vcc")
        e.I("v_mov_b32 v165, v164")
        e.I("v_mov_b32 v166, v164")
        e.I("v_mov_b32 v167, v164")

    def g1_bias_ops(self):
        e = self.e

        def f():
            e.I(f"s_lshl_b32 {s(sT0)}, {s(sFB)}, 8")
            e.I(f"s_lshl_b32 {s(sT1)}, {s(sW)}, 6")
            e.I(f"s_add_u32 {s(sT0)}, {s(sT0)}, {s(sT1)}")
            e.I("v_and_b32 v183, 31, v1")
            e.I(f"v_lshl_add_u32 v183, v183, 1, {s(sT0)}")
            e.vmem(f"global_load_ushort v184, v183, {s(pB1,2)}", "b1")
            e.I("v_xor_b32 v183, 64, v183")
            e.vmem(f"global_load_ushort v185, v183, {s(pB1,2)}", "b1")
        return [f]

    def p0_compute(self, q, publish_wait=None):
        e = self.e
        e.I("v_and_b32 v12, 31, v1")
        e.I("v_lshrrev_b32 v13, 5, v1")
        e.I(f"s_lshl_b32 {s(sT0)}, {s(sW)}, 1")
        e.I(f"v_add_u32 v14, {s(sT0)}, v13")
        e.I("v_lshlrev_b32 v15, 10, v14")
        e.I("v_lshl_or_b32 v15, v12, 2, v15")
        e.I(f"v_add_u32 v16, {KBUF + 5*128}, v15")
        e.I(f"v_add_u32 v17, {VBUF}, v15")
        e.I("v_lshrrev_b32 v15, 2, v12")
        e.I("v_lshlrev_b32 v18, 2, v13")
        e.I("v_xor_b32 v15, v15, v18")
        e.I("v_lshlrev_b32 v15, 4, v15")
        e.I("v_and_b32 v18, 3, v12")
        e.I("v_lshl_or_b32 v15, v18, 2, v15")
        e.I("v_lshl_or_b32 v15, v14, 10, v15")
        e.I(f"v_add_u32 v104, {KVS}, v15")
        for k in range(1, 4):
            e.I(f"v_xor_b32 {v(104+k)}, {16*k}, v104")
        e.I("v_lshrrev_b32 v12, 4, v1")
        e.I("v_bfe_u32 v13, v1, 2, 2")
        e.I("v_lshl_add_u32 v14, v12, 3, v13")
        e.I("v_sub_u32 v14, 31, v14")
        e.I("v_bfe_u32 v15, v1, 1, 1")
        e.I(f"s_lshl_b32 {s(sT0)}, {s(sW)}, 1")
        e.I(f"v_add_u32 v15, {s(sT0)}, v15")
        e.I("v_and_b32 v18, 1, v1")
        for h in range(2):
            if h:
                e.I("v_subrev_u32 v14, 4, v14")
            e.I("v_bfe_u32 v19, v14, 1, 3")
            e.I("v_xor_b32 v19, v19, v15")
            e.I("v_lshlrev_b32 v19, 4, v19")
            e.I("v_lshl_or_b32 v19, v18, 3, v19")
            e.I("v_lshl_or_b32 v19, v14, 7, v19")
            e.I(f"v_add_u32 {v(108+h)}, {KVS}, v19")
        e.I("v_and_b32 v110, 15, v1")
        e.I("v_lshlrev_b32 v110, 12, v110")
        e.I("v_lshl_or_b32 v110, v12, 4, v110")
        e.I("s_waitcnt lgkmcnt(0)")
        e.wait_vm("p0k", "p0v")
        self.stamp("kv_in", 2)
        e.I("s_barrier")
        for i in range(11):
            e.lds(f"ds_read_b32 {v(188+i)}, v16 offset:{128*i}", f"k{i}")
        for i in range(4):
            e.lds(f"ds_read_b32 {v(20+i)}, v17 offset:{128*i}", f"v{i}")
        e.wait_vm("p0w")
        e.I("v_lshlrev_b32 v54, 16, v28")
        e.I("v_lshlrev_b32 v55, 16, v30")
        e.I("v_and_b32 v56, 0xffff0000, v28")
        e.I("v_and_b32 v57, 0xffff0000, v30")
        e.I("v_lshlrev_b32 v58, 16, v29")
        e.I("v_lshlrev_b32 v59, 16, v31")
        e.I("v_and_b32 v60, 0xffff0000, v29")
        e.I("v_and_b32 v61, 0xffff0000, v31")
        for i in range(11):
            e.wait_lg(f"k{i}")
            e.I(f"v_lshlrev_b32 {v(32+2*i)}, 16, {v(188+i)}")
            e.I(f"v_and_b32 {v(33+2*i)}, 0xffff0000, {v(188+i)}")
            if i == 3:
                for i2 in range(4, 8):
                    e.lds(f"ds_read_b32 {v(20+i2)}, v17 offset:{128*i2}", f"v{i2}")
        self.stamp("p0a", 4)
        q.pop()
        self.stamp("p0b", 4)
        for i in range(8):
            e.I(f"v_pk_mul_f32 {v(64+2*i,2)}, {v(32+2*(i+3),2)}, v[54:55]")
        q.pop()
        for j in range(1, 4):
            for i in range(8):
                e.I(f"v_pk_fma_f32 {v(64+2*i,2)}, {v(32+2*(i+3-j),2)}, {v(54+2*j,2)}, {v(64+2*i,2)}")
            q.pop()
        for i in range(8):
            e.wait_lg(f"v{i}")
            e.I(f"v_lshlrev_b32 {v(80+2*i)}, 16, {v(20+i)}")
            e.I(f"v_and_b32 {v(81+2*i)}, 0xffff0000, {v(20+i)}")
        q.pop()
        for i in range(8):
            e.I(f"v_pk_mul_f32 {v(64+2*i,2)}, {v(64+2*i,2)}, {v(80+2*i,2)}")
        for i in range(8):
            e.I(f"v_cvt_pk_bf16_f32 {v(96+i)}, {v(64+2*i)}, {v(65+2*i)}")
        for i in range(8):
            e.lds(f"ds_write_b32 {v(104+(i>>1))}, {v(96+i)} offset:{128*i}", "kvw")
        self.stamp("p0c", 4)
        q.pop()
        e.wait_vm("p0x")
        self.stamp("p0d", 4)
        for n in range(2):
            e.I(f"v_mov_b32 {v(232+2*n)}, 0")
            e.I(f"v_mov_b32 {v(233+2*n)}, 0")
        for k in range(4):
            for n in range(2):
                e.I(f"v_dot2c_f32_bf16 {v(232+2*n)}, 0x3f803f80, {v(224+4*n+k)}")
                e.I(f"v_dot2c_f32_bf16 {v(233+2*n)}, {v(224+4*n+k)}, {v(224+4*n+k)}")
        e.wait_lg("kvw")
        e.I("s_barrier")
        self.stamp("p0e", 4)
        for n in range(2):
            for h in range(2):
                e.lds(f"ds_read_b64_tr_b16 {v(112+4*n+2*h,2)}, {v(108+h)} offset:{4096*(1-n)}", f"tr{n}")
        for pat in ("row_shr:1", "row_shr:2", "row_shr:4", "row_shr:8"):
            for r in range(232, 236):
                e.I(f"v_add_f32_dpp {v(r)}, {v(r)}, {v(r)} {pat} row_mask:0xf bank_mask:0xf")
        e.I(f"s_lshl_b32 {s(sT0)}, {s(sDk)}, 18")
        e.I(f"s_lshl_b32 {s(sT1)}, {s(sW)}, 16")
        e.I(f"s_add_u32 {s(sT0)}, {s(sT0)}, {s(sT1)}")
        e.I(f"s_lshl_b32 {s(sT1)}, {s(sR)}, 7")
        e.I(f"s_sub_u32 {s(sT0)}, {s(sT0)}, {s(sT1)}")
        e.I(f"s_add_u32 {s(sT0)}, {s(sT0)}, {UT + 2*1984}")
        for n in range(2):
            e.wait_lg(f"tr{n}")
            e.vmem(f"buffer_store_dwordx4 {v(112+4*n,4)}, v110, {s(rWS,4)}, {s(sT0)} offen offset:{64*n} sc1", "p0st")
        for r in range(232, 236):
            e.I(f"v_add_f32_dpp {v(r)}, {v(r)}, {v(r)} row_bcast:15 row_mask:0xa bank_mask:0xf")
        for r in range(232, 236):
            e.I(f"v_add_f32_dpp {v(r)}, {v(r)}, {v(r)} row_bcast:31 row_mask:0xc bank_mask:0xf")
        e.I(f"s_mov_b32 {s(sC)}, 0x3b000000")
        for n in range(2):
            e.I(f"v_mul_f32 {v(232+2*n)}, {s(sC)}, {v(232+2*n)}")
            e.I(f"v_mul_f32 {v(233+2*n)}, {s(sC)}, {v(233+2*n)}")
        for n in range(2):
            e.I(f"v_fma_f32 {v(233+2*n)}, -{v(232+2*n)}, {v(232+2*n)}, {v(233+2*n)}")
        for n in range(2):
            e.I(f"v_max_f32 {v(233+2*n)}, 0, {v(233+2*n)}")
        for n in range(2):
            e.I(f"v_add_f32 {v(233+2*n)}, 0x3727c5ac, {v(233+2*n)}")
        for n in range(2):
            e.I(f"v_rsq_f32 {v(233+2*n)}, {v(233+2*n)}")
        e.I(f"s_lshl_b32 {s(sT0)}, s2, 6")
        e.I(f"s_lshl_b32 {s(sT1)}, {s(sW)}, 4")
        e.I(f"s_add_u32 {s(sT0)}, {s(sT0)}, {s(sT1)}")
        e.I(f"s_add_u32 {s(sT0)}, {s(sT0)}, {STATS}")
        e.I("v_mov_b32 v236, 0")
        e.I(f"s_mov_b64 {s(sEX,2)}, exec")
        e.I("s_lshl_b64 exec, 1, 63")
        e.vmem(f"buffer_store_dwordx2 v[232:233], v236, {s(rWS,4)}, {s(sT0)} offen sc1", "p0st")
        e.vmem(f"buffer_store_dwordx2 v[234:235], v236, {s(rWS,4)}, {s(sT0)} offen offset:8 sc1", "p0st")
        e.I(f"s_mov_b64 exec, {s(sEX,2)}")
        self.stamp("p0f", 4)
        self.nonce_issue()
        q.drain()

    def h_ops(self):
        e = self.e
        ops = []

        def setup():
            e.I(f"s_mul_i32 {s(sT4)}, {s(sFH)}, {HC_CH}")
            e.I(f"s_mul_i32 {s(sT5)}, {s(sSH)}, {HC_RHO}")
            e.I(f"s_add_u32 {s(sT6)}, {s(sT4)}, {s(sT5)}")
            e.I(f"s_lshl_b32 {s(sT4)}, {s(sSH)}, 1")
            e.I(f"s_sub_u32 {s(sT4)}, {s(sT4)}, 250")
            e.I(f"v_lshl_add_u32 v200, v1, 4, {s(sT4)}")
        ops.append(setup)
        for n in range(5):
            def f(n=n):
                if n:
                    e.I("v_add_u32 v200, 1024, v200")
                if n == 4:
                    e.I(f"s_mov_b64 {s(sEX,2)}, exec")
                    e.I("s_mov_b64 exec, 0xffff")
                e.I(f"s_add_u32 m0, {s(sT6)}, {HC + 1024*n}")
                e.vmem(f"buffer_load_dwordx4 v200, {s(rH,4)}, 0 offen lds", "hc")
                if n == 4:
                    e.I(f"s_mov_b64 exec, {s(sEX,2)}")
            ops.append(f)
        return ops

    def h_patch(self):
        e = self.e
        e.I(f"s_lshl_b32 {s(sT4)}, {s(sHP)}, 16")
        e.I(f"s_lshr_b32 {s(sT5)}, {s(sHP)}, 16")
        e.I(f"s_lshl_b32 {s(sT0)}, {s(sHP+1)}, 16")
        e.I(f"s_or_b32 {s(sT5)}, {s(sT5)}, {s(sT0)}")
        e.I(f"s_cmp_eq_u32 {s(sSH)}, 0")
        e.I(f"s_cselect_b32 {s(sT4)}, {s(sT4)}, {s(sHP)}")
        e.I(f"s_cselect_b32 {s(sT5)}, {s(sT5)}, {s(sHP+1)}")
        e.I("v_mov_b32 v204, 0")
        e.I("v_mov_b32 v205, 0")
        e.I(f"v_mov_b32 v206, {s(sT4)}")
        e.I(f"v_mov_b32 v207, {s(sT5)}")
        e.I(f"s_mul_i32 {s(sT4)}, {s(sFH)}, {HC_CH}")
        e.I(f"s_mul_i32 {s(sT5)}, {s(sSH)}, {HC_RHO}")
        e.I(f"s_add_u32 {s(sT4)}, {s(sT4)}, {s(sT5)}")
        e.I(f"s_add_u32 {s(sT4)}, {s(sT4)}, {HC + 240}")
        e.I(f"v_mov_b32 v203, {s(sT4)}")
        e.wait_vm("hc")
        e.I(f"s_mov_b64 {s(sEX,2)}, exec")
        e.I("s_mov_b64 exec, 1")
        e.lds("ds_write_b128 v203, v[204:207]", "hpatch")
        e.I(f"s_mov_b64 exec, {s(sEX,2)}")

    def flags_mid_setup(self, with_stats):
        e = self.e

        def f():
            e.I("v_and_b32 v250, 31, v1")
            e.I(f"s_and_b32 {s(sT2)}, s2, 0xe0")
            e.I(f"v_add_u32 v250, {s(sT2)}, v250")
            e.I("v_lshlrev_b32 v250, 7, v250")
            e.I("v_and_b32 v251, 3, v1")
            e.I(f"s_lshl_b32 {s(sT2)}, {s(sDk)}, 2")
            e.I(f"v_add_u32 v251, {s(sT2)}, v251")
            e.I("v_lshlrev_b32 v251, 7, v251")
            e.I(f"v_add_u32 v251, {FLAGD}, v251")
            e.I("v_cmp_lt_u32 vcc, 31, v1")
            e.I("v_cndmask_b32 v250, v250, v251, vcc")
            if with_stats:
                e.I("v_and_b32 v251, 15, v1")
                e.I(f"s_lshl_b32 {s(sT2)}, {s(sRB)}, 4")
                e.I(f"v_add_u32 v251, {s(sT2)}, v251")
                e.I("v_lshlrev_b32 v251, 7, v251")
                e.I("v_cmp_lt_u32 vcc, 47, v1")
                e.I("v_cndmask_b32 v250, v250, v251, vcc")
        return f

    def u_load_ops(self):
        e = self.e

        def setup():
            e.I(f"s_lshl_b32 {s(sT0)}, {s(sCH)}, 12")
            e.I(f"s_add_u32 {s(sT0)}, {s(sT0)}, {UT}")
            e.I(f"s_add_u32 {s(rU)}, {s(pWS)}, {s(sT0)}")
            e.I(f"s_addc_u32 {s(rU+1)}, {s(pWS+1)}, 0")
            e.I(f"s_mov_b32 {s(rU+2)}, 4096")
            e.I(f"s_mov_b32 {s(rU+3)}, 0x00020000")
            e.I(f"s_lshl_b32 {s(sT1)}, {s(sSH)}, 2")
            e.I(f"s_sub_u32 {s(sT1)}, 4, {s(sT1)}")
            e.I(f"v_lshl_add_u32 v208, v1, 4, {s(sT1)}")
        ops = [setup]
        for n in range(4):
            def f(n=n):
                e.vmem(f"buffer_load_dwordx4 {v(212+4*n,4)}, v208, {s(rU,4)}, 0 offen offset:{1024*n} sc1", f"u{n}")
            ops.append(f)
        return ops

    def u_write_ops(self):
        e = self.e

        def setup():
            e.I(f"s_mul_i32 {s(sT0)}, {s(sFH)}, {UR_CH}")
            e.I(f"s_mul_i32 {s(sT1)}, {s(sSH)}, {UR_P}")
            e.I(f"s_add_u32 {s(sT0)}, {s(sT0)}, {s(sT1)}")
            e.I(f"s_add_u32 {s(sT0)}, {s(sT0)}, {UR}")
            e.I("v_lshrrev_b32 v209, 4, v1")
            e.I("v_add_u32 v209, v209, v1")
            e.I(f"v_lshl_add_u32 v209, v209, 4, {s(sT0)}")
            e.I(f"v_lshl_add_u32 v210, v1, 4, {s(sT0)}")
            for k in range(4):
                e.I(f"v_mov_b32 {v(228+k)}, 0")
            e.lds("ds_write_b128 v210, v[228:231] offset:4352", "uz")
            e.lds("ds_write_b128 v210, v[228:231] offset:5376", "uz")
        ops = [setup]
        for n in range(4):
            def f(n=n):
                e.wait_vm(f"u{n}")
                e.lds(f"ds_write_b128 v209, {v(212+4*n,4)} offset:{1088*n}", "uw")
            ops.append(f)
        return ops

    def w2_load_ops(self):
        e = self.e

        def setup():
            e.I(f"s_lshl_b32 {s(sT0)}, {s(sDk)}, 2")
            e.I(f"s_add_u32 {s(sT0)}, {s(sT0)}, {s(sW)}")
            e.I(f"s_mul_i32 {s(sT0)}, {s(sT0)}, {56*1024}")
            e.I(f"s_add_u32 {s(sT0)}, {s(sT0)}, {W2F}")
            e.I(f"s_lshl_b32 {s(sT1)}, {s(sFH)}, 10")
            e.I(f"s_add_u32 {s(sW2a)}, {s(sT0)}, {s(sT1)}")
            e.I(f"s_xor_b32 {s(sT1)}, {s(sT1)}, 1024")
            e.I(f"s_add_u32 {s(sW2b)}, {s(sT0)}, {s(sT1)}")
            e.I("v_lshlrev_b32 v235, 4, v1")
        ops = [setup]
        for t in range(28):
            for db in range(2):
                def f(t=t, db=db):
                    so = sW2b if db else sW2a
                    if t % 2 == 0 and t > 0:
                        e.I(f"s_add_u32 {s(so)}, {s(so)}, 4096")
                    e.vmem(f"buffer_load_dwordx4 {a((2*t+db)*4,4)}, v235, {s(rWS,4)}, {s(so)} offen offset:{2048*(t%2)} sc1", f"w2_{t}")
                ops.append(f)
        return ops

    def stats_load_ops(self):
        e = self.e

        def f():
            e.I(f"s_lshl_b32 {s(sT0)}, {s(sRB)}, 10")
            e.I(f"s_lshl_b32 {s(sT1)}, {s(sSH)}, 9")
            e.I(f"s_add_u32 {s(sT0)}, {s(sT0)}, {s(sT1)}")
            e.I(f"s_add_u32 {s(sT0)}, {s(sT0)}, {STATS}")
            e.I("v_and_b32 v183, 31, v1")
            e.I("v_lshlrev_b32 v183, 3, v183")
            e.vmem(f"buffer_load_dwordx2 v[186:187], v183, {s(rWS,4)}, {s(sT0)} offen sc1", "st")
            e.vmem(f"buffer_load_dwordx2 v[188:189], v183, {s(rWS,4)}, {s(sT0)} offen offset:256 sc1", "st")
        return [f]

    def g1_reads(self, T):
        e = self.e
        st, t = divmod(T, 4)
        slot = st % 4
        hi = slot >= 2
        so = (slot & 1) * SLOT
        F = 128 + 16 * (T & 1)
        vA = 178 if hi else 176
        vB = (172 if hi else 168) + t
        A0, A1, B0, B1 = F, F + 4, F + 8, F + 12
        r = []
        r.append(lambda: e.lds(f"ds_read_b64_tr_b16 {v(A0,2)}, {v(vA)} offset:{so + 4096*t}", f"A0_{T}"))
        r.append(lambda: e.lds(f"ds_read_b64_tr_b16 {v(A0+2,2)}, {v(vA)} offset:{so + 4096*t + 1024}", f"A0_{T}"))
        r.append(lambda: e.lds(f"ds_read_b128 {v(B0,4)}, {v(vB)} offset:{so}", f"B0_{T}"))
        r.append(lambda: e.lds(f"ds_read_b128 {v(B1,4)}, {v(vB)} offset:{so + 4096}", f"B1_{T}"))
        r.append(lambda: e.lds(f"ds_read_b64_tr_b16 {v(A1,2)}, {v(vA+1)} offset:{so + 4096*t}", f"A1_{T}"))
        r.append(lambda: e.lds(f"ds_read_b64_tr_b16 {v(A1+2,2)}, {v(vA+1)} offset:{so + 4096*t + 1024}", f"A1_{T}"))
        return r

    def g1_main(self, late):
        e = self.e
        ACC = 64
        e.wait_vm("g1s0")
        e.wait_lg_all()
        e.I("s_barrier")
        self.stamp("B0", 2)
        pend = Queue(self.g1_stage_ops(3))
        for f in self.g1_reads(0):
            f()
        for T in range(32):
            st, t = divmod(T, 4)
            F = 128 + 16 * (T & 1)
            A0, A1, B0, B1 = F, F + 4, F + 8, F + 12
            first = (T == 0)
            nxt = self.g1_reads(T + 1) if T < 31 else []
            if "x_nolds" in self.opts and T > 0:
                nxt = []
            boundary = (t == 3 and st < 7)

            def mf(fi, si, A, B):
                c = ACC + 16 * (2 * fi + si)
                src = "0" if first else v(c, 16)
                e.I(f"v_mfma_f32_32x32x16_bf16 {v(c,16)}, {v(A,4)}, {v(B,4)}, {src}")

            e.wait_lg(f"A0_{T}", f"B0_{T}")
            mf(0, 0, A0, B0)
            if boundary:
                e.wait_lg_all()
                e.wait_vm(f"g1s{st+1}")
                if st + 1 == 4:
                    self.stamp("S4")
                if st + 1 == 6:
                    self.stamp("S6")
                if st + 1 == 7:
                    self.poll_check("mid")
                if "x_nobar" not in self.opts or st + 1 in (3, 7):
                    e.I("s_barrier")
                self.stamp(f"B{st+1}", 3)
                if st + 1 == 3:
                    self.signal(self.own_flag(FLAGA), need_nonce=True)
                if st + 4 < 8 and "x_nodma" not in self.opts:
                    pend.ops.extend(self.g1_stage_ops(st + 4))
                if st + 1 == 5:
                    pend.ops.extend(self.h_ops())
                    pend.ops.extend(self.g1_bias_ops())
                    pend.ops.extend(self.xt_ops(10, 11))
                if st + 1 == 6:
                    self.poll_issue(self.flags_mid_setup(True), "mid")
                if st + 1 == 7:
                    pend.ops.extend(late.ops)
                    late.ops = []
            for f in nxt[:3]:
                f()
            e.wait_lg(f"B1_{T}")
            mf(0, 1, A0, B1)
            for f in nxt[3:]:
                f()
            e.wait_lg(f"A1_{T}")
            mf(1, 0, A1, B0)
            pend.pop()
            mf(1, 1, A1, B1)
            csrc = "0" if first else "v[160:163]"
            if "x_nocs" not in self.opts:
                e.I(f"v_mfma_f32_16x16x32_bf16 v[160:163], v[164:167], {v(A0,4)}, {csrc}")
            pend.pop()
            if T >= 28:
                pend.pop()
        return pend

    def g1_epilogue(self, q):
        e = self.e
        ACC = 64
        e.I("v_and_b32 v12, 31, v1")
        e.I(f"s_lshl_b32 {s(sT0)}, {s(sW)}, 7")
        e.I(f"s_add_u32 {s(sT0)}, {s(sT0)}, {CSX}")
        e.I(f"v_lshl_add_u32 v13, v12, 2, {s(sT0)}")
        e.lds("ds_write_b32 v13, v160", "csw")
        e.I("v_xor_b32 v14, 128, v13")
        e.I("v_cmp_gt_u32 vcc, 32, v1")
        e.wait_vm("st")
        for si in range(2):
            mu, rs = 186 + 2 * si, 187 + 2 * si
            P = 136 + 4 * si
            e.I(f"v_rcp_f32 v22, {v(rs)}")
            e.I(f"v_sub_f32 v23, 0, {v(mu)}")
            e.I(f"v_mul_f32 {v(30+2*si)}, {LOG2E:#x}, {v(rs)}")
            e.I(f"v_cvt_pk_bf16_f32 v24, v23, v22")
            e.I(f"v_mov_b32 {v(31+2*si)}, {v(30+2*si)}")
            e.I("v_lshlrev_b32 v25, 16, v24")
            e.I("v_and_b32 v26, 0xffff0000, v24")
            e.I("v_sub_f32 v25, v23, v25")
            e.I("v_sub_f32 v26, v22, v26")
            e.I("v_cvt_pk_bf16_f32 v27, v25, v26")
            e.I("v_and_b32 v28, 0xffff, v24")
            e.I("v_lshl_or_b32 v28, v27, 16, v28")
            e.I("v_lshrrev_b32 v27, 16, v27")
            e.I(f"v_cndmask_b32 {v(P)}, 0, v28, vcc")
            e.I(f"v_cndmask_b32 {v(P+1)}, 0, v24, vcc")
            e.I(f"v_cndmask_b32 {v(P+2)}, 0, v27, vcc")
            e.I(f"v_mov_b32 {v(P+3)}, 0")
            if si == 0:
                e.wait_lg("csw")
                e.I("s_barrier")
                e.lds("ds_read_b32 v17, v14", "cs1")
        e.wait_vm("b1")
        for fi in range(2):
            if fi:
                e.wait_lg("cs1")
            cs = 160 if fi == 0 else 17
            b = 184 + fi
            P = 128 + 4 * fi
            e.I(f"v_cvt_pk_bf16_f32 {v(P)}, {v(cs)}, {v(cs)}")
            e.I(f"v_and_b32 v22, 0xffff0000, {v(P)}")
            e.I(f"v_sub_f32 v23, {v(cs)}, v22")
            e.I(f"v_cvt_pk_bf16_f32 v23, v23, v23")
            e.I(f"v_and_b32 v23, 0xffff, v23")
            e.I(f"v_lshl_or_b32 {v(P+1)}, {v(b)}, 16, v23")
            e.I(f"v_mov_b32 {v(P+2)}, {v(b)}")
            e.I(f"v_mov_b32 {v(P+3)}, 0")
        for fi in range(2):
            for si in range(2):
                c = ACC + 16 * (2 * fi + si)
                e.I(f"v_mfma_f32_32x32x16_bf16 {v(c,16)}, {v(128+4*fi,4)}, {v(136+4*si,4)}, {v(c,16)}")
        e.I(f"s_lshl_b32 {s(sT0)}, {s(sRB)}, 2")
        e.I(f"s_lshl_b32 {s(sT1)}, {s(sSH)}, 1")
        e.I(f"s_add_u32 {s(sT0)}, {s(sT0)}, {s(sT1)}")
        e.I(f"s_mul_i32 {s(sT0)}, {s(sT0)}, 112")
        e.I(f"s_lshl_b32 {s(sT1)}, {s(sFB)}, 3")
        e.I(f"s_add_u32 {s(sT0)}, {s(sT0)}, {s(sT1)}")
        e.I(f"s_lshl_b32 {s(sT1)}, {s(sFH)}, 2")
        e.I(f"s_add_u32 {s(sT0)}, {s(sT0)}, {s(sT1)}")
        e.I(f"s_lshl_b32 {s(sT0)}, {s(sT0)}, 10")
        e.I(f"s_add_u32 {s(sACTo)}, {s(sT0)}, {ACT}")
        e.I(f"s_add_u32 {s(sACTo2)}, {s(sACTo)}, {112*1024}")
        e.I("v_lshlrev_b32 v34, 4, v1")
        e.I(f"s_lshl_b32 {s(sT0)}, {s(sSH)}, 11")
        e.I(f"v_add_u32 v35, {s(sT0)}, v34")
        e.I("v_xor_b32 v34, 2048, v35")
        self.stamp("corr", 2)
        for fi in range(2):
            for si in range(2):
                c = ACC + 16 * (2 * fi + si)
                cc = 30 + 2 * si
                for half in range(2):
                    b = c + 8 * half
                    T_ = 36
                    O_ = 44 + 4 * half
                    for k in range(0, 8, 2):
                        e.I(f"v_pk_mul_f32 {v(b+k,2)}, {v(b+k,2)}, {v(cc,2)}")
                    q.pop()
                    for k in range(8):
                        e.I(f"v_exp_f32 {v(T_+k)}, {v(b+k)}")
                    q.pop()
                    for k in range(0, 8, 2):
                        e.I(f"v_pk_add_f32 {v(T_+k,2)}, {v(T_+k,2)}, 1.0 op_sel_hi:[1,0]")
                    for k in range(0, 8, 2):
                        e.I(f"v_pk_fma_f32 {v(T_+k,2)}, {v(T_+k,2)}, {v(T_+k,2)}, 1.0 op_sel_hi:[1,1,0]")
                    q.pop()
                    for k in range(8):
                        e.I(f"v_rcp_f32 {v(T_+k)}, {v(T_+k)}")
                    q.pop()
                    for k in range(0, 8, 2):
                        e.I(f"v_pk_fma_f32 {v(T_+k,2)}, {v(T_+k,2)}, -2.0, 1.0 op_sel_hi:[1,0,0]")
                    for k in range(0, 8, 2):
                        e.I(f"v_pk_mul_f32 {v(b+k,2)}, {v(b+k,2)}, {v(T_+k,2)}")
                    for k in range(4):
                        e.I(f"v_cvt_pk_bf16_f32 {v(O_+k)}, {v(b+2*k)}, {v(b+2*k+1)}")
                    so = sACTo2 if si else sACTo
                    e.vmem(f"buffer_store_dwordx4 {v(O_,4)}, {v(34 if fi else 35)}, {s(rWS,4)}, {s(so)} offen offset:{1024*half} sc1", "act")

    def w2prep_loads(self):
        e = self.e
        e.I(f"s_sub_u32 {s(sT0)}, {s(sIdx)}, 28")
        e.I(f"s_lshl_b32 {s(sT0)}, {s(sT0)}, 3")
        e.I(f"s_add_u32 {s(sKO)}, {s(sT0)}, {s(sX)}")
        e.I(f"s_and_b32 {s(sT0)}, {s(sKO)}, 3")
        e.I(f"s_mul_i32 {s(sT0)}, {s(sT0)}, {448*1024}")
        e.I(f"s_lshr_b32 {s(sT1)}, {s(sKO)}, 2")
        e.I(f"s_lshl_b32 {s(sT1)}, {s(sT1)}, 7")
        e.I(f"s_add_u32 {s(sT0)}, {s(sT0)}, {s(sT1)}")
        e.I(f"s_mul_i32 {s(sT1)}, {s(sW)}, {7*16*1024}")
        e.I(f"s_add_u32 {s(sXs)}, {s(sT0)}, {s(sT1)}")
        e.I(f"s_mul_i32 {s(sWs)}, {s(sW)}, {14*1024}")
        e.I("v_and_b32 v180, 7, v1")
        e.I("v_bfe_u32 v181, v1, 4, 1")
        e.I("v_lshlrev_b32 v181, 2, v181")
        e.I("v_xor_b32 v180, v180, v181")
        e.I("v_lshlrev_b32 v180, 4, v180")
        e.I("v_lshrrev_b32 v181, 3, v1")
        e.I("v_lshl_or_b32 v180, v181, 10, v180")
        ops = []
        for t in range(7):
            for hh in range(2):
                def f(t=t, hh=hh):
                    e.I(f"s_add_u32 {s(sT5)}, {s(sXs)}, {(16*t + 8*hh)*1024}")
                    self.dma(180, rW2, s(sT5), (sWs, W2S + 2048 * t + 1024 * hh), f"w2p{t}")
                ops.append(f)
        return ops

    def w2prep_compute(self):
        e = self.e
        e.I("v_lshrrev_b32 v12, 5, v1")
        e.I("v_bfe_u32 v13, v1, 2, 2")
        e.I("v_lshl_add_u32 v12, v12, 2, v13")
        e.I("v_lshlrev_b32 v12, 7, v12")
        e.I("v_bfe_u32 v13, v1, 3, 1")
        e.I("v_lshl_or_b32 v12, v13, 6, v12")
        e.I("v_bfe_u32 v13, v1, 4, 1")
        e.I("v_lshl_or_b32 v12, v13, 5, v12")
        e.I("v_and_b32 v13, 3, v1")
        e.I("v_lshl_or_b32 v12, v13, 3, v12")
        e.I(f"v_add_u32 v14, {s(sWs)}, v12")
        e.I("v_xor_b32 v15, 64, v14")
        e.I("v_lshlrev_b32 v16, 4, v1")
        e.I(f"s_mul_i32 {s(sT0)}, {s(sKO)}, {56*1024}")
        e.I(f"s_mul_i32 {s(sT1)}, {s(sW)}, {14*1024}")
        e.I(f"s_add_u32 {s(sT0)}, {s(sT0)}, {s(sT1)}")
        e.I(f"s_add_u32 {s(sXs)}, {s(sT0)}, {W2F}")
        for t in range(7):
            e.wait_vm(f"w2p{t}")
            for db in range(2):
                for h in range(2):
                    e.lds(f"ds_read_b64_tr_b16 {v(64+8*t+4*db+2*h,2)}, {v(14+db)} offset:{W2S + 2048*t + 1024*h}", f"w2r{t}")
        for t in range(7):
            e.wait_lg(f"w2r{t}")
            if t:
                e.I(f"s_add_u32 {s(sXs)}, {s(sXs)}, 2048")
            for db in range(2):
                e.vmem(f"buffer_store_dwordx4 {v(64+8*t+4*db,4)}, v16, {s(rWS,4)}, {s(sXs)} offen offset:{1024*db} sc1", "w2st")

    def conv_main(self, hook):
        e = self.e
        ACC0, ACC1, BR, WIN, NW = 8, 24, 40, 64, 16
        vA, vB = 200, 201
        e.I("v_and_b32 v202, 1, v1")
        e.I(f"v_mul_u32_u24 v202, {HC_RHO}, v202")
        e.I("v_bfe_u32 v203, v1, 1, 3")
        e.I("v_lshl_add_u32 v202, v203, 5, v202")
        e.I("v_lshrrev_b32 v204, 4, v1")
        e.I("v_lshl_add_u32 v202, v204, 9, v202")
        e.I(f"s_mul_i32 {s(sT0)}, {s(sFH)}, {HC_CH}")
        e.I(f"s_add_u32 {s(sT0)}, {s(sT0)}, {HC}")
        e.I(f"v_add_u32 {v(vA)}, {s(sT0)}, v202")
        e.I("v_and_b32 v202, 1, v1")
        e.I(f"v_mul_u32_u24 v202, {UR_P}, v202")
        e.I("v_lshlrev_b32 v204, 1, v204")
        e.I("v_sub_u32 v204, v204, v203")
        e.I("v_add_u32 v204, 7, v204")
        e.I("v_mul_u32_u24 v204, 272, v204")
        e.I("v_add_u32 v202, v202, v204")
        e.I(f"s_mul_i32 {s(sT0)}, {s(sFH)}, {UR_CH}")
        e.I(f"s_add_u32 {s(sT0)}, {s(sT0)}, {UR}")
        e.I(f"v_add_u32 {v(vB)}, {s(sT0)}, v202")
        e.wait_lg_all()
        e.I("s_barrier")
        self.stamp("cvgo", 2)

        def run(steps):
            issued = {}
            nb = [0]
            bslots = {}

            def wkey(n, dt):
                return (steps[n]["phib"], steps[n]["t"] + dt)

            seq = {}
            cnt = 0
            for n in range(len(steps)):
                for dt in range(3):
                    k = wkey(n, dt)
                    if k not in seq:
                        seq[k] = cnt
                        cnt += 1

            def issue_w(n, dt):
                k = wkey(n, dt)
                if k in issued:
                    return
                issued[k] = True
                u = seq[k]
                off = 2 * k[0] + 16 * k[1]
                slot = u % NW
                e.lds(f"ds_read_b128 {v(WIN+4*slot,4)}, {v(vA)} offset:{off}", f"W{k}")
                if slot < 2 and u >= NW:
                    e.lds(f"ds_read_b128 {v(WIN+4*(NW+slot),4)}, {v(vA)} offset:{off}", f"W{k}")

            def base(n):
                u = seq[wkey(n, 0)]
                u1, u2 = seq[wkey(n, 1)], seq[wkey(n, 2)]
                assert u1 == u + 1 and u2 == u + 2
                slot = u % NW
                return WIN + 4 * slot

            def issue_b(n):
                st = steps[n]
                for (J, acc, first) in st["jobs"]:
                    slot = nb[0] % 6
                    nb[0] += 1
                    bslots[(n, J)] = slot
                    t = st["t"]
                    off = 272 * (8 * (1 - J) + st["phib"] // 128) + 16 * (t & 15) + 272 * (t >> 4)
                    e.lds(f"ds_read_b128 {v(BR+4*slot,4)}, {v(vB)} offset:{off}", f"B{n}_{J}")

            for dt in range(3):
                issue_w(0, dt)
            issue_b(0)
            for dt in range(3):
                issue_w(1, dt)
            issue_b(1)
            unit = 0
            for n, st in enumerate(steps):
                nxt = n + 2 if n + 2 < len(steps) else None
                cnt2 = 0
                b0 = base(n)
                for (J, acc, first) in st["jobs"]:
                    slot = bslots[(n, J)]
                    e.wait_lg(f"B{n}_{J}", f"W{wkey(n,0)}", f"W{wkey(n,1)}")
                    for i in range(4):
                        if i == 3:
                            e.wait_lg(f"W{wkey(n,2)}")
                        src = "0" if first else v(acc + 4 * i, 4)
                        e.I(f"v_mfma_f32_16x16x32_bf16 {v(acc+4*i,4)}, {v(b0+2*i,4)}, {v(BR+4*slot,4)}, {src}")
                        cnt2 += 1
                        if nxt is not None and cnt2 == 1:
                            for dt in range(3):
                                issue_w(nxt, dt)
                        if nxt is not None and cnt2 == 2:
                            issue_b(nxt)
                        if i == 2:
                            hook(unit, 0)
                        if i == 3:
                            hook(unit, 1)
                    unit += 1

        la = e.newlabel("cvB")
        lj = e.newlabel("cvJ")
        e.I(f"s_cmp_eq_u32 {s(sSH)}, 0")
        e.I(f"s_cbranch_scc0 {la}")
        snap = e.snapshot()
        hook_state = hook.save()
        steps = []
        for t in range(32):
            jobs = [(0, ACC0, t == 0)]
            if t < 16:
                jobs.append((1, ACC1, t == 0))
            steps.append(dict(phib=0, t=t, jobs=jobs))
        run(steps)
        e.I(f"s_lshl_b32 {s(sT0)}, {s(sFH)}, 12")
        e.I(f"s_add_u32 {s(sT0)}, {s(sT0)}, {JX}")
        e.I(f"v_lshl_add_u32 v202, v1, 4, {s(sT0)}")
        for i in range(4):
            e.lds(f"ds_write_b128 v202, {v(ACC1+4*i,4)} offset:{1024*i}", "jx")
        e.wait_lg_all()
        e.I("s_barrier")
        snapA = e.snapshot()
        e.I(f"s_branch {lj}")
        e.restore(snap)
        hook.load(hook_state)
        e.label(la)
        e.I("s_nop 7")
        steps = []
        for t in range(16, 32):
            steps.append(dict(phib=0, t=t, jobs=[(1, ACC1, t == 16)]))
        for t in range(32):
            steps.append(dict(phib=1024, t=t, jobs=[(1, ACC1, False)]))
        run(steps)
        e.I(f"s_lshl_b32 {s(sT0)}, {s(sFH)}, 12")
        e.I(f"s_add_u32 {s(sT0)}, {s(sT0)}, {JX}")
        e.I(f"v_lshl_add_u32 v202, v1, 4, {s(sT0)}")
        e.wait_lg_all()
        e.I("s_barrier")
        for i in range(4):
            e.lds(f"ds_read_b128 {v(ACC0+4*i,4)}, v202 offset:{1024*i}", f"jr{i}")
        for i in range(4):
            e.wait_lg(f"jr{i}")
            for r in range(0, 4, 2):
                e.I(f"v_pk_add_f32 {v(ACC0+4*i+r,2)}, {v(ACC0+4*i+r,2)}, {v(ACC1+4*i+r,2)}")
        assert e.snapshot()[0] == snapA[0], "VMEM order differs between the conv roles"
        e.label(lj)
        e.I("s_nop 7")
        e.lg.ops = []
        e.I(f"s_mul_i32 {s(sT0)}, {s(sW)}, 2304")
        e.I(f"s_add_u32 {s(sT0)}, {s(sT0)}, {YL}")
        e.I("v_bfe_u32 v203, v1, 1, 3")
        e.I("v_mul_u32_u24 v203, 272, v203")
        e.I("v_lshrrev_b32 v204, 4, v1")
        e.I("v_lshl_add_u32 v203, v204, 6, v203")
        e.I("v_and_b32 v205, 1, v1")
        e.I("v_lshl_add_u32 v203, v205, 2, v203")
        e.I(f"v_add_u32 v203, {s(sT0)}, v203")
        for i in range(4):
            for b in range(2):
                e.I(f"v_cvt_pk_bf16_f32 {v(40+2*i+b)}, {v(ACC0+4*i+2*b)}, {v(ACC0+4*i+2*b+1)}")
        for i in range(4):
            for b in range(2):
                e.lds(f"ds_write_b32 v203, {v(40+2*i+b)} offset:{32*b + 8*i}", "yw")
        e.I("v_add_u32 v204, v204, v1")
        e.I(f"v_lshl_add_u32 v204, v204, 4, {s(sT0)}")
        e.wait_lg("yw")
        for n in range(2):
            e.lds(f"ds_read_b128 {v(48+4*n,4)}, v204 offset:{1088*n}", f"yr{n}")
        e.I(f"s_lshl_b32 {s(sT0)}, {s(sCH)}, 12")
        e.I(f"s_lshl_b32 {s(sT1)}, {s(sSH)}, 11")
        e.I(f"s_add_u32 {s(sT0)}, {s(sT0)}, {s(sT1)}")
        e.I(f"s_add_u32 {s(sT0)}, {s(sT0)}, {YT}")
        e.I("v_lshlrev_b32 v205, 4, v1")
        for n in range(2):
            e.wait_lg(f"yr{n}")
            e.vmem(f"buffer_store_dwordx4 {v(48+4*n,4)}, v205, {s(rWS,4)}, {s(sT0)} offen offset:{1024*n} sc1", "yst")

    def flagB_setup(self):
        e = self.e

        def f():
            e.I(f"s_lshr_b32 {s(sT2)}, {s(sR)}, 1")
            e.I(f"s_and_b32 {s(sT3)}, {s(sT2)}, 3")
            e.I(f"s_mul_i32 {s(sT3)}, {s(sT3)}, 7")
            e.I(f"s_lshr_b32 {s(sT2)}, {s(sT2)}, 2")
            e.I(f"s_lshl_b32 {s(sT2)}, {s(sT2)}, 1")
            e.I("v_min_u32 v250, 13, v1")
            e.I("v_cmp_lt_u32 vcc, 6, v250")
            e.I("v_cndmask_b32 v251, 0, 1, vcc")
            e.I("v_mul_u32_u24 v252, 7, v251")
            e.I("v_sub_u32 v250, v250, v252")
            e.I(f"v_add_u32 v250, {s(sT3)}, v250")
            e.I("v_lshl_add_u32 v250, v250, 3, v251")
            e.I(f"v_add_u32 v250, {s(sT2)}, v250")
            e.I("v_lshlrev_b32 v250, 7, v250")
            e.I(f"v_add_u32 v250, {FLAGB}, v250")
        return f

    def flagC_setup(self):
        e = self.e

        def f():
            e.I("v_and_b32 v250, 31, v1")
            e.I(f"s_lshl_b32 {s(sT2)}, {s(sDk)}, 5")
            e.I(f"v_add_u32 v250, {s(sT2)}, v250")
            e.I("v_lshlrev_b32 v250, 7, v250")
            e.I(f"v_add_u32 v250, {FLAGC}, v250")
        return f

    RING, DEPTH = 136, 8

    def act_setup(self):
        e = self.e
        e.I(f"s_lshl_b32 {s(sT0)}, {s(sR)}, 1")
        e.I(f"s_add_u32 {s(sT1)}, {s(sT0)}, {s(sSH)}")
        e.I(f"s_xor_b32 {s(sT2)}, {s(sT1)}, 1")
        e.I(f"s_mul_i32 {s(sT3)}, {s(sW)}, 28")
        for (dst, src) in ((sG2a, sT1), (sG2b, sT2)):
            e.I(f"s_mul_i32 {s(dst)}, {s(src)}, 112")
            e.I(f"s_add_u32 {s(dst)}, {s(dst)}, {s(sT3)}")
            e.I(f"s_lshl_b32 {s(dst)}, {s(dst)}, 10")
            e.I(f"s_add_u32 {s(dst)}, {s(dst)}, {ACT}")
        e.I("v_lshlrev_b32 v235, 4, v1")

    def act_ld(self, t, sb):
        e = self.e
        r = self.RING + 8 * (t % self.DEPTH)
        so = sG2b if sb else sG2a
        if t % 4 == 0 and t > 0:
            e.I(f"s_add_u32 {s(so)}, {s(so)}, 4096")
        e.vmem(f"buffer_load_dwordx4 {v(r+4*sb,4)}, v235, {s(rWS,4)}, {s(so)} offen offset:{1024*(t%4)} sc1", f"act{t}")

    def final_loads(self):
        e = self.e
        ops = []

        def f0():
            e.I("v_lshrrev_b32 v12, 3, v1")
            e.I("v_and_b32 v13, 7, v1")
            e.I("v_lshlrev_b32 v14, 12, v12")
            e.I("v_lshl_or_b32 v14, v13, 4, v14")
            e.I(f"s_lshl_b32 {s(sT0)}, {s(sDk)}, 18")
            e.I(f"s_lshl_b32 {s(sT1)}, {s(sW)}, 16")
            e.I(f"s_add_u32 {s(sT0)}, {s(sT0)}, {s(sT1)}")
            e.I(f"s_lshl_b32 {s(sT1)}, {s(sR)}, 7")
            e.I(f"s_add_u32 {s(sT0)}, {s(sT0)}, {s(sT1)}")
            e.I(f"s_add_u32 {s(sT0)}, {s(sT0)}, {YT}")
            e.vmem(f"buffer_load_dwordx4 v[212:215], v14, {s(rWS,4)}, {s(sT0)} offen sc1", "y0")
            e.I(f"s_add_u32 {s(sT0)}, {s(sT0)}, 32768")
            e.vmem(f"buffer_load_dwordx4 v[216:219], v14, {s(rWS,4)}, {s(sT0)} offen sc1", "y1")
        ops.append(f0)

        def f1():
            e.I("v_and_b32 v24, 31, v1")
            e.I("v_lshrrev_b32 v25, 5, v1")
            e.I(f"s_lshl_b32 {s(sT0)}, {s(sR)}, 9")
            e.I(f"s_lshl_b32 {s(sT1)}, {s(sSH)}, 8")
            e.I(f"s_add_u32 {s(sT0)}, {s(sT0)}, {s(sT1)}")
            e.I(f"s_add_u32 {s(sT0)}, {s(sT0)}, {STATS}")
            e.I("v_lshlrev_b32 v26, 3, v24")
            e.vmem(f"buffer_load_dwordx2 v[28:29], v26, {s(rWS,4)}, {s(sT0)} offen sc1", "fst")
            e.I(f"s_lshl_b32 {s(sT0)}, {s(sDk)}, 7")
            e.I(f"s_lshl_b32 {s(sT1)}, {s(sFH)}, 6")
            e.I(f"s_add_u32 {s(sT0)}, {s(sT0)}, {s(sT1)}")
            e.I(f"v_lshl_add_u32 v26, v25, 3, {s(sT0)}")
            for j4 in range(4):
                e.vmem(f"global_load_dwordx2 {v(32+2*j4,2)}, v26, {s(pD,2)} offset:{16*j4}", "fd")
        ops.append(f1)

        def f2():
            e.I("v_bfe_u32 v14, v1, 4, 1")
            e.I("v_lshlrev_b32 v14, 2, v14")
            e.I("v_xor_b32 v14, v14, v13")
            e.I("v_lshlrev_b32 v14, 4, v14")
            e.I("v_lshl_or_b32 v14, v12, 7, v14")
            e.I(f"s_lshl_b32 {s(sT0)}, {s(sW)}, 11")
            e.I(f"s_add_u32 {s(sT0)}, {s(sT0)}, {YS}")
            e.I(f"v_add_u32 v14, {s(sT0)}, v14")
        ops.append(f2)

        def f3():
            e.wait_vm("y0")
            e.lds("ds_write_b128 v14, v[212:215]", "ysw")
            e.wait_vm("y1")
            e.lds("ds_write_b128 v14, v[216:219] offset:1024", "ysw")
        ops.append(f3)

        def f4():
            e.I("v_bfe_u32 v15, v1, 1, 3")
            e.I(f"s_lshl_b32 {s(sT0)}, {s(sFH)}, 2")
            e.I(f"v_xor_b32 v15, {s(sT0)}, v15")
            e.I("v_lshlrev_b32 v15, 4, v15")
            e.I("v_lshl_or_b32 v15, v25, 3, v15")
            e.I("v_lshl_or_b32 v15, v24, 7, v15")
            e.I(f"s_lshl_b32 {s(sT0)}, {s(sSH)}, 12")
            e.I(f"v_add_u32 v15, {s(sT0)}, v15")
        ops.append(f4)

        def f5():
            for j4 in range(4):
                e.I(f"v_xor_b32 {v(40+j4)}, {16*j4}, v15")
                e.I(f"v_add_u32 {v(44+j4)}, {OT}, {v(40+j4)}")
                e.I(f"v_add_u32 {v(40+j4)}, {KVS}, {v(40+j4)}")
        ops.append(f5)

        def f6():
            e.wait_vm("xt")
            for j4 in range(4):
                e.lds(f"ds_read_b64 {v(48+2*j4,2)}, {v(40+j4)}", f"kv{j4}")
                e.lds(f"ds_read_b64 {v(56+2*j4,2)}, {v(40+j4)} offset:{XT-KVS}", f"x{j4}")
        self.f6 = f6

        def f7():
            e.I("v_bfe_u32 v16, v1, 2, 2")
            e.I("v_lshl_add_u32 v16, v25, 2, v16")
            e.I(f"s_lshl_b32 {s(sT0)}, {s(sFH)}, 5")
            e.I(f"v_add_u32 v16, {s(sT0)}, v16")
            e.I("v_lshlrev_b32 v16, 7, v16")
            e.I("v_bfe_u32 v17, v1, 3, 1")
            e.I(f"v_xor_b32 v17, {s(sSH)}, v17")
            e.I("v_lshl_or_b32 v16, v17, 6, v16")
            e.I("v_bfe_u32 v17, v1, 4, 1")
            e.I("v_lshl_or_b32 v16, v17, 5, v16")
            e.I("v_and_b32 v17, 3, v1")
            e.I("v_lshl_or_b32 v16, v17, 3, v16")
            e.I(f"v_add_u32 v16, {YS}, v16")
        ops.append(f7)
        return ops

    def gemm2(self):
        e = self.e
        ACC, RING, DEPTH = 64, self.RING, self.DEPTH
        q = Queue()
        for t in range(28):
            r = RING + 8 * (t % DEPTH)
            e.wait_vm(f"act{t}", f"w2_{t}")
            for db in range(2):
                for sb in range(2):
                    c = ACC + 16 * (2 * db + sb)
                    src = "0" if t == 0 else v(c, 16)
                    e.I(f"v_mfma_f32_32x32x16_bf16 {v(c,16)}, {a((2*t+db)*4,4)}, {v(r+4*sb,4)}, {src}")
                    k = 2 * db + sb
                    if k < 2 and t + DEPTH - 1 < 28 and t > 0:
                        self.act_ld(t + DEPTH - 1, k)
                    if k >= 2:
                        q.pop()
            if t == 0:
                self.act_ld(DEPTH - 1, 0)
                self.act_ld(DEPTH - 1, 1)
            if t == 5:
                e.wait_vm("yst")
                e.I("s_barrier")
                self.signal(self.own_flag(FLAGC))
            if t == 13:
                self.poll_issue(self.flagC_setup(), "pc")
            if t == 17:
                self.poll_check("pc")
                e.I("s_barrier")
                fl = self.final_loads()
                nop = lambda: None
                q.ops.extend([fl[0], fl[1], fl[2], fl[4], fl[5], fl[6]] + [nop] * 8 + [fl[3]])
        q.drain()
        self.stamp("g2main")
        for aa in range(1, 4):
            e.I(f"s_xor_b32 {s(sT0)}, {s(sW)}, {aa}")
            e.I(f"s_mul_i32 {s(sT0)}, {s(sT0)}, 3")
            e.I(f"s_add_u32 {s(sT0)}, {s(sT0)}, {aa-1}")
            e.I(f"s_lshl_b32 {s(sT0)}, {s(sT0)}, 12")
            e.I(f"s_add_u32 {s(sT0)}, {s(sT0)}, {RED}")
            e.I(f"v_lshl_add_u32 {v(8+aa)}, v1, 4, {s(sT0)}")
        for aa in range(1, 4):
            for jq in range(4):
                e.lds(f"ds_write_b128 {v(8+aa)}, {v(ACC+16*aa+4*jq,4)} offset:{1024*jq}", "redw")
        e.I(f"s_mul_i32 {s(sT0)}, {s(sW)}, {3*4096}")
        e.I(f"s_add_u32 {s(sT0)}, {s(sT0)}, {RED}")
        e.I(f"v_lshl_add_u32 v8, v1, 4, {s(sT0)}")
        e.wait_lg_all()
        e.I("s_barrier")
        for m in range(3):
            for jq in range(4):
                e.lds(f"ds_read_b128 {v(80+16*m+4*jq,4)}, v8 offset:{4096*m + 1024*jq}", f"redr{m}{jq}")
            if m == 0:
                for j4 in range(4):
                    e.lds(f"ds_read_b64_tr_b16 {v(128+2*j4,2)}, v16 offset:{1024*j4}", f"yt{j4}")
        self.f6()
        e.wait_vm("fst", "fd")
        e.I("v_mul_f32 v30, v28, v29")
        e.I("v_sub_f32 v30, 0, v30")
        e.I("v_mov_b32 v31, v30")
        e.I("v_mov_b32 v28, v29")
        e.I(f"s_mov_b32 {s(sT0)}, {LN2:#x}")
        e.I(f"s_mov_b32 {s(sT1)}, {LN2:#x}")
        for m in range(3):
            for jq in range(4):
                e.wait_lg(f"redr{m}{jq}")
                for r in range(0, 4, 2):
                    e.I(f"v_pk_add_f32 {v(ACC+4*jq+r,2)}, {v(ACC+4*jq+r,2)}, {v(80+16*m+4*jq+r,2)}")
        self.stamp("red", 2)
        for j4 in range(4):
            c = ACC + 4 * j4
            X, Y, K, D_, E, O = 152, 156, 160, 164, 168, 172

            def unpack(dst, src):
                e.I(f"v_lshlrev_b32 {v(dst)}, 16, {v(src)}")
                e.I(f"v_and_b32 {v(dst+1)}, 0xffff0000, {v(src)}")
                e.I(f"v_lshlrev_b32 {v(dst+2)}, 16, {v(src+1)}")
                e.I(f"v_and_b32 {v(dst+3)}, 0xffff0000, {v(src+1)}")
            for k in range(4):
                e.I(f"v_exp_f32 {v(E+k)}, -{v(c+k)}")
            e.wait_lg(f"yt{j4}", f"kv{j4}", f"x{j4}")
            unpack(X, 56 + 2 * j4)
            unpack(Y, 128 + 2 * j4)
            unpack(K, 48 + 2 * j4)
            unpack(D_, 32 + 2 * j4)
            for k in range(0, 4, 2):
                e.I(f"v_pk_add_f32 {v(E+k,2)}, {v(E+k,2)}, 1.0 op_sel_hi:[1,0]")
            for k in range(4):
                e.I(f"v_rcp_f32 {v(E+k)}, {v(E+k)}")
            for k in range(0, 4, 2):
                e.I(f"v_pk_fma_f32 {v(Y+k,2)}, {v(K+k,2)}, {v(D_+k,2)}, {v(Y+k,2)}")
                e.I(f"v_pk_fma_f32 {v(K+k,2)}, {v(X+k,2)}, v[28:29], v[30:31]")
                e.I(f"v_pk_mul_f32 {v(c+k,2)}, {v(c+k,2)}, {s(sT0,2)}")
            for k in range(0, 4, 2):
                e.I(f"v_pk_mul_f32 {v(Y+k,2)}, {v(Y+k,2)}, {v(K+k,2)}")
                e.I(f"v_pk_mul_f32 {v(c+k,2)}, {v(c+k,2)}, {v(E+k,2)}")
            for k in range(0, 4, 2):
                e.I(f"v_pk_fma_f32 {v(X+k,2)}, {v(Y+k,2)}, {v(c+k,2)}, {v(X+k,2)}")
            e.I(f"v_cvt_pk_bf16_f32 {v(O+2*(j4&1))}, {v(X)}, {v(X+1)}")
            e.I(f"v_cvt_pk_bf16_f32 {v(O+2*(j4&1)+1)}, {v(X+2)}, {v(X+3)}")
            e.lds(f"ds_write_b64 {v(44+j4)}, {v(O+2*(j4&1),2)}", "ow")
        e.I("v_lshrrev_b32 v9, 4, v1")
        e.I("v_xor_b32 v10, v13, v9")
        e.I("v_lshlrev_b32 v12, 10, v12")
        e.I("v_lshl_or_b32 v10, v10, 4, v12")
        e.I("v_xor_b32 v11, 64, v10")
        e.I(f"s_lshl_b32 {s(sT0)}, {s(sW)}, 11")
        e.I(f"s_add_u32 {s(sT0)}, {s(sT0)}, {OT}")
        e.I(f"v_lshl_add_u32 v9, v1, 4, {s(sT0)}")
        e.wait_lg_all()
        e.I("s_barrier")
        e.lds("ds_read_b128 v[16:19], v9", "o0")
        e.lds("ds_read_b128 v[20:23], v9 offset:1024", "o1")
        e.I(f"s_lshl_b32 {s(sT0)}, {s(sR)}, 16")
        e.I(f"s_lshl_b32 {s(sT1)}, {s(sDk)}, 7")
        e.I(f"s_add_u32 {s(sT0)}, {s(sT0)}, {s(sT1)}")
        e.I(f"s_lshl_b32 {s(sT1)}, {s(sW)}, 14")
        e.I(f"s_add_u32 {s(sT0)}, {s(sT0)}, {s(sT1)}")
        e.wait_lg("o0")
        e.vmem(f"buffer_store_dwordx4 v[16:19], v10, {s(rOUT,4)}, {s(sT0)} offen", "out")
        e.I(f"s_add_u32 {s(sT0)}, {s(sT0)}, 8192")
        e.wait_lg("o1")
        e.vmem(f"buffer_store_dwordx4 v[20:23], v11, {s(rOUT,4)}, {s(sT0)} offen", "out")

    def build(self):
        e = self.e
        self.prologue()
        self.p0_loads()
        self.late_srds()
        self.stamp("p0ld", 1)
        self.nonce_publish()
        e.I(f"s_cmp_ge_u32 {s(sIdx)}, 28")
        e.I("s_cbranch_scc1 L_helper")
        snap0 = e.snapshot()

        self.g1_setup()
        for f in self.g1_stage_ops(0):
            f()
        self.code_prefetch()
        self.g1_addr()
        self.stamp("issued")
        q = Queue(self.g1_stage_ops(1) + self.g1_stage_ops(2))
        self.p0_q2(q)
        self.stamp("p0done")
        late = Queue(self.stats_load_ops() + self.u_load_ops() + self.w2_load_ops())
        pend = self.g1_main(late)
        self.stamp("g1main")
        rest = Queue(pend.ops[:8] + self.u_write_ops() + pend.ops[8:])
        self.g1_epilogue(rest)
        self.stamp("mish")
        left = list(rest.ops)
        n_w2_done = sum(1 for (t, o) in e.vm.ops if t.startswith("w2_"))
        issued_tags = [t for (t, o) in e.vm.ops]
        self.h_patch()
        stateG = e.snapshot()
        self.n_left = len(left)
        e.I("s_branch L_join")

        e.restore(snap0)
        e.label("L_helper")
        ops = self.w2prep_loads()
        q = Queue(ops)
        q.pop(6)
        self.p0_q2(q)
        self.stamp("p0done")
        self.w2prep_compute()
        e.wait_vm_all()
        e.I("s_barrier")
        self.signal(self.own_flag(FLAGA), need_nonce=True)

        def jflag():
            e.I(f"s_lshl_b32 {s(sT0)}, {s(sKO)}, 7")
            e.I(f"s_add_u32 {s(sT0)}, {s(sT0)}, {FLAGD}")
        self.signal(jflag)
        self.stamp("g1main")
        for f in self.h_ops() + self.xt_ops(10, 11):
            f()
        self.poll_issue(self.flags_mid_setup(False), "mid")
        self.poll_check("mid")
        e.I("s_barrier")
        w2 = self.w2_load_ops()
        nleft = self.n_left
        for f in self.u_load_ops() + self.u_write_ops() + w2[:len(w2) - nleft]:
            f()
        self.h_patch()
        e.wait_vm_all()
        self.stamp("mish")
        e.label("L_join")
        e.restore(stateG)
        e.I("s_nop 4")

        g = self

        class Hook:
            def __init__(self):
                self.q = Queue(left)

            def save(self):
                return list(self.q.ops)

            def load(self, st):
                self.q.ops = list(st)

            def __call__(self, unit, pos):
                if pos == 0:
                    self.q.pop()
                    return
                if unit == 11:
                    e.wait_vm("act")
                    e.I("s_barrier")
                    lab = e.newlabel("nosigB")
                    e.I(f"s_cmp_ge_u32 {s(sIdx)}, 28")
                    e.I(f"s_cbranch_scc1 {lab}")
                    g.signal(g.own_flag(FLAGB))
                    e.label(lab)
                if unit == 30:
                    g.poll_issue(g.flagB_setup(), "pb")
                if unit == 37:
                    g.poll_check("pb")
                    e.I("s_barrier")
                    g.act_setup()
                if 38 <= unit < 38 + 7:
                    t = unit - 38
                    g.act_ld(t, 0)
                    g.act_ld(t, 1)
        hook = Hook()
        self.conv_main(hook)
        assert not hook.q.ops, len(hook.q.ops)
        self.stamp("cvdone")
        self.gemm2()
        self.stamp("end")
        return self.finish()

    def p0_q2(self, q):
        class Q2:
            def pop(self_, k=1):
                q.pop(2 * k)

            def drain(self_):
                q.drain()
        self.p0_compute(Q2())

    def finish(self):
        e = self.e
        e.I("s_waitcnt vmcnt(0) lgkmcnt(0)")
        e.I("s_endpgm")
        e.label("L_codeend")
        body = e.text()
        head = open(os.path.join(os.path.dirname(os.path.abspath(__file__)), "header.txt")).read()
        out = head
        out += f"; @launch grid=(256,1,1) block=(256,1,1) lds={LDS_BYTES}\n"
        out += '.amdgcn_target "amdgcn-amd-amdhsa--gfx950"\n.text\n'
        out += f".globl {NAME}\n.p2align 8\n.type {NAME},@function\n{NAME}:\n"
        out += body
        out += f""".section .rodata,"a"
.p2align 6
.amdhsa_kernel {NAME}
  .amdhsa_next_free_vgpr 512
  .amdhsa_next_free_sgpr 102
  .amdhsa_accum_offset 256
  .amdhsa_group_segment_fixed_size 0
  .amdhsa_kernarg_size 104
  .amdhsa_user_sgpr_count 2
  .amdhsa_user_sgpr_kernarg_segment_ptr 1
  .amdhsa_system_sgpr_workgroup_id_x 1
.end_amdhsa_kernel
"""
        return out


if __name__ == "__main__":
    out = sys.argv[1]
    stamps = 0
    opts = []
    for x in sys.argv[2:]:
        if x.startswith("stamps"):
            stamps = int(x[6:] or 1)
        else:
            opts.append(x)
    g = Gen(stamps=stamps, opts=opts)
    open(out, "w").write(g.build())
    if stamps:
        open(out + ".names", "w").write("\n".join(g.stamp_names))
```
